```python
import torch

def _softmax(x, axis=-1):
    return torch.softmax(x, dim=axis)
def _gelu(x):
    return torch.nn.functional.gelu(x, approximate="tanh")
def _silu(x):
    return torch.nn.functional.silu(x)
def _sigmoid(x):
    return torch.sigmoid(x)
def _layernorm(x, axis=-1, eps=1e-5):
    m = x.mean(dim=axis, keepdim=True)
    v = x.var(dim=axis, keepdim=True, unbiased=False)
    return (x - m) / torch.sqrt(v + eps)
def _scatter_add(tgt, idx, src, axis=0):
    return tgt.clone().index_add_(axis, idx, src)
def _segment_sum(src, seg, n):
    out = torch.zeros((n,) + src.shape[1:], dtype=src.dtype)
    return out.index_add_(0, seg, src)
def _pad(x, pw):
    flat = tuple(v for pair in reversed(pw) for v in pair)
    return torch.nn.functional.pad(x, flat)

kernel_name = 'gated_mix__compressed_kv_cla__dense_activation_mish__prompt'

def setup_inputs():

    _w = (lambda a: (lambda t: t.to(torch.bfloat16) if t.is_floating_point() else t)(torch.as_tensor(a)))
    def _A_setup():
        B, H, Sq, Sk, D, M = 1, 32, 2048, 2048, 128, 640
        Dc = 4 * D
        return {
            "x": _w((lambda *s: torch.randn(*s, dtype=torch.bfloat16) * 0.05)(B, Sq, M)),
            "c_kv": _w((lambda *s: torch.randn(*s, dtype=torch.bfloat16) * 0.4)(B, Sk, Dc)),
            "w_q": _w((lambda *s: torch.randn(*s, dtype=torch.bfloat16) * 6.4)(M, H, D) * (M ** -0.5)),
            "w_uk": _w((lambda *s: torch.randn(*s, dtype=torch.bfloat16) * 6.4)(Dc, H, D) * (Dc ** -0.5)),
            "w_uv": _w((lambda *s: torch.randn(*s, dtype=torch.bfloat16) * 0.4)(Dc, H, D) * (Dc ** -0.5)),
            "w_o": _w((lambda *s: torch.randn(*s, dtype=torch.bfloat16) * 0.4)(H, D, M) * ((H * D) ** -0.5)),
        }
    _A_in = _A_setup()

    def _B_setup():
        B, S, D, F = 1, 2048, 640, 1728
        return {
            "x": _w((lambda *s: torch.randn(*s, dtype=torch.bfloat16) * 0.05)(B, S, D)),
            "w1": _w((lambda *s: torch.randn(*s, dtype=torch.bfloat16) * 12.8)(D, F) * (D ** -0.5)),
            "b1": _w((lambda *s: torch.randn(*s, dtype=torch.bfloat16) * 0.2)(F)),
            "w2": _w((lambda *s: torch.randn(*s, dtype=torch.bfloat16) * 0.05)(F, D) * (F ** -0.5)),
        }
    _B_in = _B_setup()

    return {
        "A_x": _A_in["x"],
        "A_c_kv": _A_in["c_kv"],
        "A_w_q": _A_in["w_q"],
        "A_w_uk": _A_in["w_uk"],
        "A_w_uv": _A_in["w_uv"],
        "A_w_o": _A_in["w_o"],
        "B_x": _B_in["x"],
        "B_w1": _B_in["w1"],
        "B_b1": _B_in["b1"],
        "B_w2": _B_in["w2"],
        "gate_w": _w((lambda *s: torch.randn(*s, dtype=torch.bfloat16) * 0.05)(640) * 16.0),
    }

def reference(A_x, A_c_kv, A_w_q, A_w_uk, A_w_uv, A_w_o, B_x, B_w1, B_b1, B_w2, gate_w):
    def _A_ref(x, c_kv, w_q, w_uk, w_uv, w_o):
        B, Sq, M = x.shape[0], x.shape[1], x.shape[2]
        Sk = c_kv.shape[1]
        H, D = w_q.shape[1], w_q.shape[2]
        q = torch.einsum("bqm,mhd->bhqd", x, w_q)
        k = torch.einsum("bkc,chd->bhkd", c_kv, w_uk)
        v = torch.einsum("bkc,chd->bhkd", c_kv, w_uv)
        scores = torch.einsum("bhqd,bhkd->bhqk", q, k) * (D ** -0.5)
        off = Sk - Sq
        qi = torch.arange(Sq)[:, None]
        kj = torch.arange(Sk)[None, :]
        cmask = kj <= (qi + off)
        scores = torch.where(cmask[None, None], scores, -1e9)
        p = _softmax(scores, axis=-1)
        ctx = torch.einsum("bhqk,bhkd->bhqd", p, v)
        return torch.einsum("bhqd,hdm->bqm", ctx, w_o)

    def _B_ref(x, w1, b1, w2):
        h = torch.einsum("bsd,df->bsf", x, w1) + b1
        sp = torch.log1p(torch.exp(-torch.abs(h))) + torch.where(h > 0, h, torch.zeros_like(h))
        act = h * torch.tanh(sp)
        return torch.einsum("bsf,fd->bsd", act, w2)

    x = A_x
    g = _sigmoid((x * gate_w).sum(-1, keepdims=True))
    a = _A_ref(x, A_c_kv, A_w_q, A_w_uk, A_w_uv, A_w_o)
    b = _B_ref(x, B_w1, B_b1, B_w2)
    return g * a + (1 - g) * b
```

```python
import re
import numpy as np

M32 = 0xFFFFFFFF


class Ins:
    __slots__ = ('text', 'ann', 'op', 'ops', 'mods', 'idx', 'vm', 'lg', 'rd', 'wr', 'kind')

    def __init__(self, text, **ann):
        self.text = text.strip()
        self.ann = ann
        self.vm = None
        self.lg = None
        parse(self)

    def render(self):
        if self.kind == 'label':
            return self.text
        if self.kind == 'auto':
            parts = []
            if self.vm is not None:
                parts.append('vmcnt(%d)' % min(self.vm, 63))
            if self.lg is not None:
                parts.append('lgkmcnt(%d)' % min(self.lg, 15))
            if not parts:
                return '  s_nop 0'
            return '  s_waitcnt ' + ' '.join(parts)
        return '  ' + self.text


_reg = re.compile(r'^(-?)(\|?)([vas])(\d+)\|?$')
_rng = re.compile(r'^(-?)([vas])\[(\d+):(\d+)\]$')


def regs_of(tok):
    tok = tok.strip()
    if tok.startswith('abs(') or tok.startswith('-abs('):
        tok = tok[tok.index('(') + 1:-1]
    m = _reg.match(tok)
    if m:
        return [(m.group(3), int(m.group(4)))]
    m = _rng.match(tok)
    if m:
        return [(m.group(2), k) for k in range(int(m.group(3)), int(m.group(4)) + 1)]
    if tok == 'vcc':
        return [('s', 'vcc_lo'), ('s', 'vcc_hi')]
    if tok in ('vcc_lo', 'vcc_hi', 'm0', 'exec_lo', 'exec_hi'):
        return [('s', tok)]
    if tok == 'exec':
        return [('s', 'exec_lo'), ('s', 'exec_hi')]
    return []


TRANS = ('v_exp_f32', 'v_rcp_f32', 'v_log_f32', 'v_rsq_f32', 'v_sqrt_f32')


def parse(I):
    t = I.text
    I.rd, I.wr, I.ops, I.mods = [], [], [], []
    if t.endswith(':') or t.startswith('.'):
        I.kind = 'label'
        I.op = ''
        return
    sp = t.split(None, 1)
    I.op = op = sp[0]
    rest = sp[1] if len(sp) > 1 else ''
    if op == 'WAIT':
        I.kind = 'auto'
        return
    toks = [x.strip() for x in rest.split(',')] if rest else []
    if toks:
        last = toks[-1].split()
        toks[-1] = last[0]
        I.mods = last[1:]
    I.ops = toks
    R = regs_of
    if op.startswith('v_mfma'):
        I.kind = 'mfma'
        I.wr = R(toks[0])
        I.rd = R(toks[1]) + R(toks[2]) + R(toks[3])
    elif op.startswith('ds_read') or op.startswith('ds_bpermute') or op.startswith('ds_swizzle'):
        I.kind = 'dsr'
        I.wr = R(toks[0])
        I.rd = sum((R(x) for x in toks[1:]), [])
    elif op.startswith('ds_write'):
        I.kind = 'dsw'
        I.rd = sum((R(x) for x in toks), [])
    elif op.startswith('buffer_load') or op.startswith('global_load'):
        if 'lds' in I.mods:
            I.kind = 'dma'
            I.rd = sum((R(x) for x in toks), []) + [('s', 'm0')]
        else:
            I.kind = 'vld'
            I.wr = R(toks[0])
            I.rd = sum((R(x) for x in toks[1:]), [])
    elif op.startswith('buffer_store') or op.startswith('buffer_atomic') or op.startswith('global_store'):
        I.kind = 'vst'
        I.rd = sum((R(x) for x in toks), [])
    elif op.startswith('buffer_'):
        I.kind = 'vst'
    elif op.startswith('v_'):
        I.kind = 'valu'
        I.wr = R(toks[0])
        I.rd = sum((R(x) for x in toks[1:]), [])
        if op.startswith('v_fmac') or op.startswith('v_pk_fmac') or op.startswith('v_writelane'):
            I.rd += R(toks[0])
        if op.startswith('v_permlane') and 'swap' in op:
            I.wr = R(toks[0]) + R(toks[1])
            I.rd = R(toks[0]) + R(toks[1])
        if op.startswith('v_add_co') or op.startswith('v_addc_co') or op.startswith('v_sub_co'):
            I.wr = R(toks[0]) + R(toks[1])
            I.rd = sum((R(x) for x in toks[2:]), [])
    elif op.startswith('s_load') or op in ('s_memtime', 's_memrealtime'):
        I.kind = 'smem'
        I.wr = R(toks[0])
        I.rd = sum((R(x) for x in toks[1:]), [])
    elif op in ('s_waitcnt', 's_barrier', 's_nop', 's_endpgm', 's_sleep', 's_setprio', 's_branch') or op.startswith('s_cbranch'):
        I.kind = {'s_waitcnt': 'wait', 's_barrier': 'bar'}.get(op, 'ctl')
    elif op.startswith('s_cmp') or op.startswith('s_bitcmp'):
        I.kind = 'salu'
        I.rd = sum((R(x) for x in toks), [])
    elif op.startswith('s_'):
        I.kind = 'salu'
        I.wr = R(toks[0])
        I.rd = sum((R(x) for x in toks[1:]), [])
        if 'saveexec' in op:
            I.wr += R('exec')
    else:
        raise ValueError('cannot parse: ' + t)


class Asm:
    def __init__(self):
        self.ins = []

    def __call__(self, text, **ann):
        if isinstance(text, Ins):
            self.ins.append(text)
            return text
        if isinstance(text, (list, tuple)):
            for x in text:
                self(x)
            return None
        last = None
        for line in text.split('\n'):
            line = line.split(';')[0].strip()
            if line:
                last = Ins(line, **ann)
                self.ins.append(last)
        return last

    def render(self):
        return '\n'.join(i.render() for i in self.ins) + '\n'


def WAIT(vm=False, lg=False, **ann):
    return Ins('WAIT', use_vm=vm, use_lg=lg, **ann)


def cost(I):
    if I.op in TRANS:
        return 2
    if I.kind in ('dma', 'vld', 'vst'):
        return 2
    if I.kind == 'dsw':
        return 2
    if I.op == 's_nop':
        return int(I.ops[0]) + 1
    if I.kind == 'label':
        return 0
    return 1


class Gaps:
    nseq = 0

    def __init__(self, mfmas, cap=2):
        self.m = [x if isinstance(x, Ins) else Ins(x) for x in mfmas]
        self.n = len(self.m)
        self.g = {k: [] for k in range(-1, self.n)}
        self.cap = cap

    def used(self, k):
        return sum(cost(x) for x in self.g[k])

    def has_valu(self, k):
        return any(x.kind == 'valu' for x in self.g[k])

    def put(self, k, ins, front=False):
        ins = ins if isinstance(ins, Ins) else Ins(ins)
        k = min(k, self.n - 1)
        if front:
            self.g[k].insert(0, ins)
        elif ins.kind in ('dsr', 'dsw', 'dma', 'vld', 'vst') and not ins.ann.get('keep_order'):
            pos = len(self.g[k])
            while pos > 0 and self.g[k][pos - 1].kind == 'valu' and not (set(self.g[k][pos - 1].wr) & set(ins.rd + ins.wr)) \
                    and not (set(self.g[k][pos - 1].rd) & set(ins.wr)):
                pos -= 1
            self.g[k].insert(pos, ins)
        else:
            self.g[k].append(ins)
        return k

    def fit(self, ins, lo, hi=None, step=1):
        ins = ins if isinstance(ins, Ins) else Ins(ins)
        hi = self.n - 1 if hi is None else min(hi, self.n - 1)
        lo = min(lo, hi)
        c = cost(ins)
        for k in range(lo, hi + 1, step):
            if self.used(k) + c <= self.cap:
                return self.put(k, ins)
        best = min(range(lo, hi + 1), key=lambda k: (self.used(k), k))
        return self.put(best, ins)

    def seq(self, lst, lo, hi=None, spread=False):
        lst = [x if isinstance(x, Ins) else Ins(x) for x in lst]
        hi = self.n - 1 if hi is None else min(hi, self.n - 1)
        lo = min(lo, hi)
        free = sum(max(0, self.cap - self.used(k)) for k in range(lo, hi + 1))
        tot = sum(cost(x) for x in lst)
        k = lo
        done = 0
        Gaps.nseq += 1
        for x in lst:
            x.ann['seq'] = Gaps.nseq
            if spread:
                k = max(k, lo + int((hi - lo + 1) * done / max(tot, 1)))
            while k < hi and self.used(k) + cost(x) > self.cap:
                rem_free = sum(max(0, self.cap - self.used(q)) for q in range(k + 1, hi + 1))
                if rem_free < tot - done and self.used(k) < self.cap + 1 + (tot - done - rem_free) // max(1, hi - k + 1):
                    break
                k += 1
            x.ann['keep_order'] = x.ann.get('keep_order', False)
            self.put(k, x)
            done += cost(x)
        return k

    def emit(self, A):
        A(self.g[-1])
        for k in range(self.n):
            A(self.m[k])
            A(self.g[k])

    def overflow(self):
        return sum(max(0, self.used(k) - self.cap) for k in range(self.n)) + self.used(-1)


class SimError(Exception):
    pass


def _lit(tok):
    try:
        return int(tok, 0) & M32
    except ValueError:
        pass
    try:
        return int(np.float32(float(tok)).view(np.uint32))
    except ValueError:
        return None


LANES = np.arange(64, dtype=np.int64)


class WaveSim:
    def __init__(self, prog, labels, wg, wave, knobs):
        self.p, self.labels = prog, labels
        self.s = {2: wg, 0: None, 1: None}
        self.v = {('v', 0): wave * 64 + LANES}
        self.scc = None
        self.knobs = knobs
        self.trace = []
        self.wave = wave

    def sv(self, tok):
        r = regs_of(tok)
        if r:
            return self.s.get(r[0][1])
        return _lit(tok)

    def vv(self, tok):
        r = regs_of(tok)
        if r and r[0][0] in 'va':
            return self.v.get(r[0])
        x = self.sv(tok)
        return None if x is None else np.full(64, x, dtype=np.int64)

    def run(self, maxsteps=400000):
        pc, epoch, n = 0, 0, 0
        P = self.p
        while True:
            n += 1
            if n > maxsteps:
                raise SimError('too many steps')
            I = P[pc]
            pc += 1
            if I.kind == 'label':
                continue
            info = None
            op, o = I.op, I.ops
            if I.kind == 'salu':
                self.salu(I)
            elif I.kind == 'smem':
                for r in I.wr:
                    self.s[r[1]] = None
            elif I.kind == 'valu':
                self.valu(I)
            elif I.kind in ('dsr', 'dsw'):
                if op.startswith('ds_bpermute') or op.startswith('ds_swizzle'):
                    info = None
                else:
                    a = self.vv(o[1] if I.kind == 'dsr' else o[0])
                    if a is None:
                        raise SimError('unknown LDS address: ' + I.text)
                    off = 0
                    for m in I.mods:
                        if m.startswith('offset:'):
                            off = int(m[7:], 0)
                    if off > 65535:
                        raise SimError('ds offset too large ' + I.text)
                    sz = 16 if '128' in op else 8 if 'b64' in op else 4
                    info = (a + off, sz)
                for r in I.wr:
                    self.v[r] = None
            elif I.kind == 'dma':
                m0 = self.s.get('m0')
                if m0 is None:
                    raise SimError('unknown m0: ' + I.text)
                off = 0
                for m in I.mods:
                    if m.startswith('offset:'):
                        off = int(m[7:], 0)
                info = (m0 + off + LANES * 16, 16)
            elif I.kind in ('vld', 'mfma'):
                for r in I.wr:
                    self.v[r] = None
            self.trace.append((I, epoch, info))
            if I.kind == 'bar':
                epoch += 1
            elif op == 's_endpgm':
                return
            elif op == 's_branch':
                pc = self.labels[o[0]]
            elif op.startswith('s_cbranch'):
                if 'taken' in I.ann:
                    t = I.ann['taken']
                    t = self.knobs.get(t, False) if isinstance(t, str) else t
                elif op in ('s_cbranch_scc0', 's_cbranch_scc1'):
                    if self.scc is None:
                        raise SimError('unknown scc at ' + I.text)
                    t = bool(self.scc) == op.endswith('1')
                else:
                    raise SimError('unannotated branch ' + I.text)
                if t:
                    pc = self.labels[o[0]]

    def salu(self, I):
        op, o = I.op, I.ops
        g = self.sv
        if op.startswith('s_cmp'):
            a, b = g(o[0]), g(o[1])
            if a is None or b is None or op.endswith('64'):
                self.scc = None
                return
            if op.endswith('i32'):
                a = a - (1 << 32) if a >> 31 else a
                b = b - (1 << 32) if b >> 31 else b
            c = op.split('_')[2]
            self.scc = {'eq': a == b, 'lg': a != b, 'lt': a < b, 'le': a <= b, 'gt': a > b, 'ge': a >= b}[c]
            return
        d = I.wr[0][1]
        if op in ('s_mov_b32', 's_movk_i32'):
            self.s[d] = g(o[1])
            return
        if op == 's_mov_b64':
            src = regs_of(o[1])
            for k, r in enumerate(I.wr):
                self.s[r[1]] = self.s.get(src[k][1]) if src else None
            return
        if op == 's_cselect_b32':
            self.s[d] = None if self.scc is None else g(o[1] if self.scc else o[2])
            return
        if op == 's_cselect_b64':
            for r in I.wr:
                self.s[r[1]] = None
            return
        if len(o) == 3 and op.endswith('32'):
            a, b = g(o[1]), g(o[2])
            if a is None or b is None:
                self.s[d] = None
                if op not in ('s_mul_i32', 's_mul_hi_u32'):
                    self.scc = None
                return
            if op in ('s_add_u32', 's_add_i32'):
                r = a + b; self.scc = r > M32
            elif op in ('s_sub_u32', 's_sub_i32'):
                r = a - b; self.scc = r < 0
            elif op == 's_mul_i32':
                r = a * b
            elif op == 's_mul_hi_u32':
                r = (a * b) >> 32
            elif op == 's_lshl_b32':
                r = a << (b & 31); self.scc = (r & M32) != 0
            elif op == 's_lshr_b32':
                r = a >> (b & 31); self.scc = r != 0
            elif op == 's_and_b32':
                r = a & b; self.scc = r != 0
            elif op == 's_or_b32':
                r = a | b; self.scc = r != 0
            elif op == 's_xor_b32':
                r = a ^ b; self.scc = r != 0
            elif op == 's_min_u32':
                r = min(a, b); self.scc = a < b
            elif op == 's_max_u32':
                r = max(a, b); self.scc = a > b
            else:
                self.s[d] = None; self.scc = None
                return
            self.s[d] = r & M32
            return
        for r in I.wr:
            self.s[r[1]] = None
        self.scc = None

    def valu(self, I):
        op, o = I.op, I.ops
        if op == 'v_readfirstlane_b32':
            x = self.vv(o[1])
            self.s[I.wr[0][1]] = None if x is None else int(x[0])
            return
        f2 = {'v_and_b32': lambda a, b: a & b, 'v_or_b32': lambda a, b: a | b, 'v_xor_b32': lambda a, b: a ^ b,
              'v_add_u32': lambda a, b: a + b, 'v_sub_u32': lambda a, b: a - b, 'v_subrev_u32': lambda a, b: b - a,
              'v_lshlrev_b32': lambda a, b: b << (a & 31), 'v_lshrrev_b32': lambda a, b: b >> (a & 31),
              'v_mul_u32_u24': lambda a, b: (a & 0xffffff) * (b & 0xffffff), 'v_mul_lo_u32': lambda a, b: (a * b)}
        f3 = {'v_lshl_add_u32': lambda a, b, c: (a << (b & 31)) + c, 'v_add_lshl_u32': lambda a, b, c: (a + b) << (c & 31),
              'v_add3_u32': lambda a, b, c: a + b + c, 'v_and_or_b32': lambda a, b, c: (a & b) | c,
              'v_lshl_or_b32': lambda a, b, c: (a << (b & 31)) | c, 'v_mad_u32_u24': lambda a, b, c: (a & 0xffffff) * (b & 0xffffff) + c,
              'v_bfe_u32': lambda a, b, c: (a >> b) & ((1 << c) - 1), 'v_xad_u32': lambda a, b, c: (a ^ b) + c}
        res = None
        if op in ('v_mov_b32', 'v_accvgpr_write_b32', 'v_accvgpr_read_b32', 'v_accvgpr_mov_b32'):
            res = self.vv(o[1])
        elif op in f2:
            a, b = self.vv(o[1]), self.vv(o[2])
            if a is not None and b is not None:
                res = f2[op](a, b) & M32
        elif op in f3:
            a, b, c = self.vv(o[1]), self.vv(o[2]), self.vv(o[3])
            if a is not None and b is not None and c is not None:
                res = f3[op](a, b, c) & M32
        for r in I.wr:
            if r[0] == 's':
                self.s[r[1]] = None
            else:
                self.v[r] = res if len(I.wr) == 1 else None


B128_GROUPS = [list(range(0, 4)) + list(range(12, 16)) + list(range(20, 28)),
               list(range(4, 12)) + list(range(16, 20)) + list(range(28, 32))]
B128_GROUPS += [[x + 32 for x in g] for g in B128_GROUPS]


def bank_conflicts(I, addr, sz):
    if I.kind == 'dsr':
        if sz == 16:
            groups, nb = B128_GROUPS, 64
        elif sz == 8:
            groups, nb = [list(range(32)), list(range(32, 64))], 64
        else:
            groups, nb = [list(range(32)), list(range(32, 64))], 32
    else:
        n = {16: 8, 8: 16, 4: 32}[sz]
        groups, nb = [list(range(k, k + n)) for k in range(0, 64, n)], 32
    extra = 0
    for g in groups:
        banks = {}
        for l in g:
            for d in range(sz // 4):
                w = int(addr[l]) // 4 + d
                banks.setdefault(w % nb, set()).add(w)
        extra += max(len(x) for x in banks.values()) - 1
    return extra


class Checker:
    def __init__(self, A, lds_bytes, nwaves=4):
        self.prog = A.ins
        self.labels = {}
        for k, I in enumerate(self.prog):
            I.idx = k
            if I.kind == 'label' and I.text.endswith(':'):
                if I.text[:-1] in self.labels:
                    raise SimError('duplicate label ' + I.text)
                self.labels[I.text[:-1]] = k
        self.lds = lds_bytes
        self.nw = nwaves
        self.errors = []
        self.conf = {}
        self.haz = {}

    def err(self, msg):
        if msg not in self.errors:
            self.errors.append(msg)

    def run(self, wg, knobs=None, resolve=True):
        T = []
        for w in range(self.nw):
            s = WaveSim(self.prog, self.labels, wg, w, knobs or {})
            s.run()
            T.append(s.trace)
        nb = [sum(1 for e in t if e[0].kind == 'bar') for t in T]
        if len(set(nb)) != 1:
            self.err('wg %d: barrier counts differ %s' % (wg, nb))
            return T
        self.W = [self.index(t) for t in T]
        for w, t in enumerate(T):
            self.regdeps(w, t, resolve)
            self.hazards(t)
        self.ldsraces(T, resolve)
        return T

    def index(self, t):
        d = {'vm': [], 'lg': [], 'waits': [], 'bars': []}
        nvm = nlg = 0
        for k, (I, ep, info) in enumerate(t):
            d['vm'].append(nvm)
            d['lg'].append(nlg)
            if I.kind in ('dma', 'vld', 'vst'):
                nvm += 1
            elif I.kind in ('dsr', 'dsw', 'smem'):
                nlg += 1
            elif I.kind in ('auto', 'wait'):
                d['waits'].append(k)
            elif I.kind == 'bar':
                d['bars'].append(k)
        d['t'] = t
        d['done'] = {}
        return d

    @staticmethod
    def fixed(I, c):
        m = re.search((r'vmcnt\((\d+)\)' if c == 'vm' else r'lgkmcnt\((\d+)\)'), I.text)
        return int(m.group(1)) if m else None

    def need(self, w, pos, before, resolve, why):
        import bisect
        d = self.W[w]
        I = d['t'][pos][0]
        c = 'vm' if I.kind in ('dma', 'vld', 'vst') else 'lg'
        if d['done'].get(pos, 1 << 60) < before:
            return
        seq = d[c][pos]
        ws = d['waits']
        lo, hi = bisect.bisect_right(ws, pos), bisect.bisect_left(ws, before)
        cap = 63 if c == 'vm' else 15
        last_auto = None
        for q in range(lo, hi):
            k = ws[q]
            J = d['t'][k][0]
            younger = d[c][k] - seq - 1
            if I.kind == 'smem':
                younger = 0
            n = self.fixed(J, c) if J.kind == 'wait' else getattr(J, c)
            if n is not None and min(n, cap) <= younger:
                d['done'][pos] = min(d['done'].get(pos, 1 << 60), k)
                return
            if J.kind == 'auto' and J.ann.get('use_' + c):
                last_auto = (J, younger, k)
        if last_auto and resolve:
            J, younger, k = last_auto
            cur = getattr(J, c)
            setattr(J, c, younger if cur is None else min(cur, younger))
            d['done'][pos] = min(d['done'].get(pos, 1 << 60), k)
            return
        self.err('missing %s wait: [%d] %s  needed by %s' % (c, I.idx, I.text, why))

    def regdeps(self, w, t, resolve):
        pend = {}
        tags = {}
        for k, (I, ep, info) in enumerate(t):
            for r in I.rd + I.wr:
                p = pend.get(r)
                if p is not None:
                    J = t[p][0]
                    same_q = (J.kind in ('dsr',) and I.kind == 'dsr' or J.kind == 'vld' and I.kind == 'vld') and r not in I.rd
                    if not same_q:
                        self.need(w, p, k, resolve, '[%d] %s' % (I.idx, I.text))
                    del pend[r]
            if I.kind in ('dsr', 'vld', 'smem'):
                for r in I.wr:
                    pend[r] = k
            if 'tag' in I.ann:
                tags.setdefault(I.ann['tag'], []).append(k)
            for tg in I.ann.get('after', ()):
                for p in tags.pop(tg, []):
                    self.need(w, p, k, resolve, '[%d] %s' % (I.idx, I.text))

    def hazards(self, t):
        n = len(t)
        lastscc = None
        for (I, _, _) in t:
            if I.op in ('s_cselect_b32', 's_cselect_b64', 's_cbranch_scc0', 's_cbranch_scc1', 's_addc_u32', 's_subb_u32'):
                ok = lastscc is not None and lastscc.ann.get('seq') == I.ann.get('seq') and \
                    (lastscc.op.startswith('s_cmp') or I.op in ('s_addc_u32', 's_subb_u32') or I.ann.get('scc_ok'))
                if not ok:
                    self.err('SCC producer suspicious: [%d] %s after %s' % (I.idx, I.text, lastscc and lastscc.text))
            if I.kind == 'salu' and not (I.op.startswith('s_mov') or I.op.startswith('s_cselect') or I.op.startswith('s_mul') or I.op.startswith('s_getpc')):
                lastscc = I
        for k in range(n):
            I = t[k][0]
            if I.kind in ('wait', 'auto', 'bar', 'ctl'):
                continue
            dist = 0
            rd, wr = set(I.rd), set(I.wr)
            q = k - 1
            while q >= 0 and dist < 9:
                J = t[q][0]
                req = 0
                jw, jr = set(J.wr), set(J.rd)
                if J.kind == 'mfma':
                    if I.kind == 'mfma':
                        ab = set(regs_of(I.ops[1]) + regs_of(I.ops[2]))
                        cc = set(regs_of(I.ops[3]))
                        if jw & ab:
                            req = 8
                        elif jw & cc and J.ops[0] != I.ops[3]:
                            req = 6
                    else:
                        if jw & (rd | wr):
                            req = 8
                        elif I.kind == 'valu' and set(regs_of(J.ops[3])) & wr:
                            req = 3
                elif J.kind == 'valu':
                    vw = {r for r in jw if r[0] != 's'}
                    sw = jw - vw
                    if I.kind == 'mfma' and vw & rd:
                        req = 2
                    elif I.kind == 'valu':
                        if J.op in TRANS and I.op not in TRANS and vw & rd:
                            req = 1
                        if I.op.startswith('v_permlane') and vw & rd:
                            req = 2
                        if (I.op.startswith('v_readfirstlane') or I.op.startswith('v_readlane')) and vw & rd:
                            req = max(req, 1)
                        if sw & rd:
                            req = max(req, 2)
                        if any('row_' in m or 'quad_perm' in m for m in I.mods) and vw & rd:
                            req = 2
                    elif I.kind in ('dma', 'vld', 'vst') and sw & rd:
                        req = 5
                elif J.kind == 'salu':
                    if I.kind == 'dma' and ('s', 'm0') in jw:
                        req = 1
                elif J.kind == 'vst' and ('x4' in J.op or 'x3' in J.op):
                    if set(regs_of(J.ops[0])) & wr:
                        req = 2
                if req > dist:
                    self.haz[I.idx] = max(self.haz.get(I.idx, 0), req - dist)
                    self.err('hazard need %d have %d: [%d] %s  ->  [%d] %s' % (req, dist, J.idx, J.text, I.idx, I.text))
                dist += int(J.ops[0]) + 1 if J.op == 's_nop' else 1
                q -= 1

    def ldsraces(self, T, resolve):
        G = 4
        ng = self.lds // G
        lw_w = np.full(ng, -1, dtype=np.int64)
        lw_p = np.full(ng, -1, dtype=np.int64)
        lw_e = np.full(ng, -1, dtype=np.int64)
        lr_p = np.full((self.nw, ng), -1, dtype=np.int64)
        lr_e = np.full((self.nw, ng), -1, dtype=np.int64)
        nep = len(self.W[0]['bars']) + 1
        ptr = [0] * self.nw
        for ep in range(nep):
            acc = []
            for w in range(self.nw):
                t = T[w]
                k = ptr[w]
                while k < len(t) and t[k][1] == ep:
                    I, _, info = t[k]
                    if info is not None:
                        a, sz = info
                        if a.max() + sz > self.lds or a.min() < 0:
                            self.err('LDS out of range: %s' % I.text)
                        else:
                            if I.kind != 'dma' and I.idx not in self.conf:
                                self.conf[I.idx] = bank_conflicts(I, a, sz)
                            g = np.unique((a[:, None] // G + np.arange(sz // G)[None, :]).ravel())
                            acc.append((w, k, I, g))
                    k += 1
                ptr[w] = k
            for (w, k, I, g) in acc:
                isw = I.kind in ('dma', 'dsw')
                keys = set(zip(lw_w[g].tolist(), lw_p[g].tolist(), lw_e[g].tolist()))
                for (ww, wp, we) in keys:
                    if ww < 0:
                        if not isw and not I.ann.get('junk_ok'):
                            self.err('LDS read of unwritten bytes: [%d] %s' % (I.idx, I.text))
                        continue
                    J = T[ww][wp][0]
                    if ww == w:
                        if J.kind == 'dma' and I.kind != 'dma' or (J.kind == 'dsw' and I.kind == 'dma'):
                            self.need(w, wp, k, resolve, 'lds [%d] %s' % (I.idx, I.text))
                    elif we == ep:
                        if not I.ann.get('junk_ok'):
                            self.err('LDS race same epoch: w%d [%d] %s  vs w%d [%d] %s' % (ww, J.idx, J.text, w, I.idx, I.text))
                    elif not I.ann.get('junk_ok'):
                        self.need(ww, wp, self.W[ww]['bars'][ep - 1], resolve, 'lds xwave [%d] %s' % (I.idx, I.text))
                if isw:
                    for rw in range(self.nw):
                        for (rp, re_) in set(zip(lr_p[rw][g].tolist(), lr_e[rw][g].tolist())):
                            if rp < 0:
                                continue
                            J = T[rw][rp][0]
                            if J.ann.get('junk_ok'):
                                continue
                            if rw == w:
                                if I.kind == 'dma':
                                    self.need(w, rp, k, resolve, 'lds war [%d] %s' % (I.idx, I.text))
                            elif re_ == ep:
                                self.err('LDS WAR race same epoch: w%d [%d] %s vs w%d [%d] %s' % (rw, J.idx, J.text, w, I.idx, I.text))
                            else:
                                self.need(rw, rp, self.W[rw]['bars'][ep - 1], resolve, 'lds xwave war [%d] %s' % (I.idx, I.text))
                    lw_w[g] = w; lw_p[g] = k; lw_e[g] = ep
                    lr_p[:, g] = -1
                else:
                    lr_p[w][g] = k; lr_e[w][g] = ep


def est_cycles(trace):
    t = 0
    mfree = 0
    for (I, ep, info) in trace:
        if I.kind == 'mfma':
            t = max(t, mfree)
            mfree = t + 16
            t += 8
        else:
            t += 4 * cost(I)
    return t
```

```python
from gen import *

vK, vV, vSw, vLin2, vMask, vOnes, vG = 2, 3, 4, 5, 8, 16, 20
vXw, vXr, vLw, vLr, vGa, vSc = 22, 23, 24, 25, 26, 6
vSc0, vSc1 = 6, 208
vP = vT + 1
L_, P_, S_, O_ = 32, 48, 80, 144
QA, QB, KR, VR, OS = 0, 64, 128, 160, 192
KV = C1
sPar, sPend, sLim = sCbuf, sCd, sCso0
NEG = f32(-1e30)
L_LO, L_HI = f32(2.0 ** -40), f32(2.0 ** 40)

Sreg = lambda par, p, kb: S_ + par * 32 + p * 8 + kb * 4
Preg = lambda par, p: P_ + par * 16 + p * 4
Oreg = lambda db, p: R('v', O_ + (p * 8 + db) * 4) if p < 2 else R('a', OS + ((p - 2) * 8 + db) * 4)


def qk(par, ps, kbase, masked=None):
    out = []
    for p in ps:
        for kb in range(2):
            for ds in range(4):
                c = None
                if ds == 0:
                    c = R('v', vMask + 4 * kb) if p == masked else '0'
                out.append(mfma(R('v', Sreg(par, p, kb)), R('a', kbase + (kb * 4 + ds) * 4), R('a', QA + p * 16 + ds * 4), c))
    return out


def pv(par, ps, vbase, first=()):
    out = []
    for db in range(8):
        for p in ps:
            out.append(mfma(Oreg(db, p), R('a', vbase + 4 * db), R('v', Preg(par, p)), '0' if p in first else None))
    for p in ps:
        out.append(mfma(R('v', L_ + 4 * p), R('v', vOnes), R('v', Preg(par, p)), '0' if p in first else None))
    return out


def sm(par, ps):
    out = []
    pend = None
    for p in ps:
        s = Sreg(par, p, 0)
        for k in range(4):
            out.append(f'v_exp_f32 v{s + 2 * k}, v{s + 2 * k}')
            if pend:
                out.append(pend)
            out.append(f'v_exp_f32 v{s + 2 * k + 1}, v{s + 2 * k + 1}')
            pend = f'v_cvt_pk_bf16_f32 v{Preg(par, p) + k}, v{s + 2 * k}, v{s + 2 * k + 1}'
    if pend:
        out.append(pend)
    return out


def rd(base, addr, imm, **ann):
    return [Ins(f'ds_read_b128 {R("a", base + 4 * k)}, v{addr} offset:{imm + 1024 * k}', **ann) for k in range(8)]


def place_sm(G, ops, lo, hi):
    n = sum(1 for x in ops if x.startswith('v_exp'))
    span = hi - lo + 1
    k = lo
    e = 0
    for x in ops:
        if x.startswith('v_exp'):
            k = max(k, lo + (e * (span - 1)) // max(n, 1))
            while k < hi and G.used(k) > 0 and (hi - k) >= (n - e):
                k += 1
            G.put(k, x)
            e += 1
            k = min(k + 1, hi)
        else:
            q = k
            while q < hi and G.used(q) + 1 > G.cap and (hi - q) > (n - e):
                q += 1
            G.put(q, x)
            k = q
    return k


def dma_group(imm):
    o = [f's_add_u32 m0, s{sMT}, {imm}']
    o += [f'buffer_load_dwordx4 v{vLin}, {srd(KV)}, s{sSrc} offen offset:{j * 1024} sc1 lds' for j in range(4)]
    o += [f's_add_u32 m0, m0, 4096']
    o += [f'buffer_load_dwordx4 v{vLin2}, {srd(KV)}, s{sSrc} offen offset:{j * 1024} sc1 lds' for j in range(4)]
    o += [f's_add_u32 s{sSrc}, s{sSrc}, 16384', f's_cmp_eq_u32 s{sSrc}, s{sEnd}', f's_cselect_b32 s{sSrc}, s{sNext}, s{sSrc}']
    if imm:
        o.append(f's_xor_b32 s{sMT}, s{sMT}, 32768')
    return o


def straight(T, ops):
    for x in ops:
        T(x)
        t = x.text if isinstance(x, Ins) else x
        if t.startswith('s_') and ' m0,' in t:
            T('s_nop 0')


def stage(g, par, first=False, bar_after=()):
    G = Gaps(qk(par ^ 1, (2, 3, 0, 1), KR) + pv(par, (2, 3, 0, 1), VR, (0, 1, 2, 3) if first else ()))
    for half, (pp, ps) in enumerate(((par, (0, 1)), (par ^ 1, (2, 3)))):
        for n in range(16):
            s_ = Sreg(pp, ps[n >> 3], 0) + (n & 7)
            G.put(32 * half + 2 * n, f'v_exp_f32 v{s_}, v{s_}')
            if n & 1:
                G.put(32 * half + 2 * n + 1, f'v_cvt_pk_bf16_f32 v{Preg(pp, ps[n >> 3]) + ((n & 7) >> 1)}, v{s_ - 1}, v{s_}')
    G.put(5, WAIT(vm=True, lg=True))
    G.put(5, Ins('s_barrier', after=bar_after))
    for x, k in zip(rd(VR, vV, par * 16384), (7, 9, 11, 15, 19, 23, 27, 31)):
        G.put(k, x)
    for x, k in zip(rd(KR, vK, par * 16384), range(35, 64, 4)):
        G.put(k, x)
    Gaps.nseq += 1
    for x, k in zip(dma_group(0 if par else 16384), (9, 13, 17, 21, 25, 29, 33, 37, 41, 45, 49, 49, 53, 57)):
        G.put(k, Ins(x, seq=Gaps.nseq))
    G.put(29, WAIT(lg=True))
    G.put(53, WAIT(lg=True))
    if par:
        G.put(57, f'v_xor_b32 v{vV}, 32768, v{vV}')
        G.put(64, f'v_xor_b32 v{vK}, 32768, v{vK}')
    G.put(66, WAIT(lg=True))
    return G


ROLE = {0: dict(X=(2, 3, 0, 1), Xm=0, Y=(3,), Ym=3), 1: dict(X=(3, 0, 1), Xm=3, Y=(0, 1), Ym=0)}


def gate_loads():
    return [f'buffer_load_dword v{vG + p}, v{vGa}, {srd(WS)}, s{sT3} offen offset:{p * 128} sc1' for p in range(2)]


def d1(g, hf):
    ro = ROLE[hf]
    q = qk(0, ro['X'], KR, ro['Xm'])
    nq = len(q)
    G = Gaps(q + pv(1, (2, 3, 0, 1), VR))
    G.put(1, f'buffer_load_dword v{vP}, off, {srd(DBG)}, 0 offset:4 sc1')
    G.put(5, WAIT(vm=True, lg=True))
    G.put(5, 's_barrier')
    G.put(nq - 1, WAIT(lg=True))
    G.put(nq + 15, WAIT(lg=True))
    place_sm(G, sm(1, (0, 1)), 0, nq - 1)
    place_sm(G, sm(0, [p for p in ro['X'] if p >= 2]), nq, G.n - 2)
    G.seq(rd(VR, vV, 16384), 6, nq + 6, spread=True)
    k = G.fit(f'v_xor_b32 v{vSw}, 8192, v{vK}', nq - 8)
    G.seq(rd(KR, vSw, 16384), max(k + 1, nq + 7), G.n - 6, spread=True)
    G.seq(dma_group(0), nq - 4, G.n - 2, spread=True)
    G.fit(f'v_xor_b32 v{vV}, 32768, v{vV}', nq + 8)
    G.fit(f'v_xor_b32 v{vK}, 32768, v{vK}', nq + 8)
    return G


def d2(g, hf, first=False):
    ro = ROLE[hf]
    xa = [p for p in ro['X'] if p >= 2]
    q = qk(1, ro['Y'], KR, ro['Ym'])
    f = (0, 1, 2, 3) if first else ()
    a, b, c = pv(0, xa, VR, f), pv(0, (0, 1), VR, f), pv(1, ro['Y'], KR)
    nq, na, nb = len(q), len(a), len(b)
    G = Gaps(q + a + b + c)
    G.put(-1, WAIT(lg=True))
    bar = nq - 8
    G.put(bar, WAIT(vm=True, lg=True))
    G.put(bar, 's_barrier')
    for k, x in enumerate(rd(VR, vV, 0)):
        G.put(bar + 1 + k - (k > 3) * 0, x)
    step = len(xa)
    for db in range(0, 8, 2):
        G.put(nq - 1 + db * step, WAIT(lg=True))
    G.put(bar, f'v_xor_b32 v{vSw}, 8192, v{vV}')
    G.seq(rd(KR, vSw, 16384), nq + 1, nq + na + 6, spread=True)
    chk = [] if first else g.spin(f'buffer_load_dword v{vP}, off, {srd(DBG)}, 0 offset:4 sc1', f'v_cmp_ne_u32 vcc, 0x100, v{vP}', 'cnt1')
    G.put(nq + na + nb - 1, WAIT(lg=True))
    G.put(nq + na + nb - 1, 's_barrier')
    place_sm(G, sm(0, (0, 1)), 0, nq + na - 2)
    place_sm(G, sm(1, ro['Y']), nq + na - 1, nq + na + nb - 2)
    k = G.seq(chk + gate_loads(), bar + 1, nq + na + nb - 2)
    if hf == 1 and not first:
        G.seq(dma_group(16384), k, G.n - 1, spread=True)
    G.fit(f'v_xor_b32 v{vV}, 32768, v{vV}', nq + na + 7)
    if first and hf == 1:
        G.seq([f'v_accvgpr_write_b32 a{OS + k}, 0' for k in range(32)] + [f'v_mov_b32 v{L_ + 8}, 0'], nq, G.n - 1)
    return G


def prologue(g):
    G = Gaps(qk(0, (2, 3, 0, 1), VR))
    G.put(-1, WAIT(lg=True))
    G.put(3, WAIT(lg=True))
    G.put(3, 's_barrier')
    L, Lb = g.lab('k3'), g.lab('k3back')
    g.tail(L + ':')
    straight(g.tail, dma_group(16384))
    g.tail(f's_branch {Lb}')
    G.seq([f's_cmp_eq_u32 s{sHF}, 0', f's_cbranch_scc1 {L}', Lb + ':'] + dma_group(0), 4, 17)
    G.fit(f'v_xor_b32 v{vK}, 32768, v{vK}', 0)
    place_sm(G, sm(0, (2, 3)), 12, 31)
    return G


def pro0(g, hf):
    ro = ROLE[hf]
    G = Gaps(qk(0, ro['X'], VR, ro['Xm']))
    G.put(-1, WAIT(lg=True))
    xa = [p for p in ro['X'] if p >= 2]
    place_sm(G, sm(0, xa), 13, G.n - 1)
    return G


def setup(g):
    A = g.A
    t = vT
    A(f'''
    s_lshl_b32 s{sT0}, s{sHF}, 13
    v_add_u32 v{vK}, s{sT0}, v{vLin}
    v_add_u32 v{vV}, 65536, v{vK}
    v_mov_b32 v{vSw}, v{vK}
    v_and_b32 v{t}, 15, v{vLane}
    v_lshlrev_b32 v{vGa}, 2, v{t}
    s_lshl_b32 s{sT0}, s{sR}, 4
    v_add_u32 v{t}, s{sT0}, v{t}
    v_lshrrev_b32 v{t+1}, 4, v{vLane}
    v_lshlrev_b32 v{t+1}, 2, v{t+1}
    v_sub_u32 v{t}, v{t}, v{t+1}
    v_mov_b32 v{t+1}, {NEG}
    ''')
    for kb in range(2):
        for e in range(4):
            A(f'v_cmp_le_i32 vcc, {16 * kb + e}, v{t}')
            A(f'v_mov_b32 v{vOnes + e}, 0x3f803f80')
            A('s_nop 0')
            A(f'v_cndmask_b32 v{vMask + 4 * kb + e}, v{t+1}, 0, vcc')
    A(f'''
    s_mov_b32 s{sBlk}, 0
    s_sub_u32 s{sQb}, 15, s{sI}
    s_and_b32 s{sPar}, s{sQb}, 1
    s_lshl_b32 s{sPar}, s{sPar}, 15
    s_mov_b32 s{sPend}, 1
    s_mov_b32 s{sCnt}, 1
    ''')


def block_scalars():
    return [f's_lshl_b32 s{sT3}, s{sQb}, 9', f's_lshl_b32 s{sT0}, s{sHF}, 8', f's_add_u32 s{sT3}, s{sT3}, s{sT0}',
            f's_lshl_b32 s{sT0}, s{sR}, 6', f's_add_u32 s{sT3}, s{sT3}, s{sT0}', f's_add_u32 s{sT3}, s{sT3}, {GG}',
            f's_lshl_b32 s{sT0}, s{sQb}, 1', f's_add_u32 s{sT0}, s{sT0}, s{sR}', f's_mul_i32 s{sCtx}, s{sT0}, {AF_RT}',
            f's_lshl_b32 s{sT0}, s{sH}, 14', f's_add_u32 s{sCtx}, s{sCtx}, s{sT0}', f's_lshl_b32 s{sT0}, s{sHF}, 11',
            f's_add_u32 s{sCtx}, s{sCtx}, s{sT0}', f's_add_u32 s{sCtx}, s{sCtx}, {AF + 54 * 4096}',
            f's_lshl_b32 s{sT0}, s{sR}, 14', f's_add_u32 s{sT1}, s{sT0}, s{sPar}', f's_add_u32 s{sT1}, s{sT1}, 65536',
            f's_add_u32 s{sT0}, s{sT0}, 131072', f's_cmp_eq_u32 s{sHF}, 0', f's_cselect_b32 s{sT2}, s{sT0}, s{sT1}',
            f's_cselect_b32 s{sT1}, s{sT1}, s{sT0}', f'v_add_u32 v{vXw}, s{sT2}, v{vLin}', f'v_add_u32 v{vXr}, s{sT1}, v{vLin}',
            f's_lshl_b32 s{sT0}, s{sWv}, 9', f's_add_u32 s{sT0}, s{sT0}, s{sPar}', f's_add_u32 s{sT0}, s{sT0}, 16384',
            f'v_lshl_add_u32 v{vLw}, v{vLane}, 2, s{sT0}', f'v_xor_b32 v{vLr}, 1024, v{vLw}']


def slow_path(g, L, Lb):
    T = g.tail
    s0, pp, m, al, t0, t1, kv, row = 212, 228, 236, 238, 240, 241, 242, 244
    Ll = g.lab('slowloop')
    T(L + ':')
    T('s_waitcnt vmcnt(0) lgkmcnt(0)')
    for k in range(64):
        T(f'v_mov_b32 v{O_ + k}, 0')
        T(f'v_mov_b32 v{S_ + k}, 0')
    for k in range(8):
        T(f'v_mov_b32 v{L_ + k}, 0')
    T(f'''
    s_lshl_b32 s{sT0}, s{sQb}, 7
    s_lshl_b32 s{sT1}, s{sHF}, 6
    s_add_u32 s{sT0}, s{sT0}, s{sT1}
    s_lshl_b32 s{sT1}, s{sR}, 4
    s_add_u32 s{sT0}, s{sT0}, s{sT1}
    v_and_b32 v{row}, 15, v{vLane}
    v_add_u32 v{row}, s{sT0}, v{row}
    v_lshrrev_b32 v{t0}, 4, v{vLane}
    v_lshlrev_b32 v{t0}, 2, v{t0}
    v_sub_u32 v{row}, v{row}, v{t0}
    v_add_u32 v{row+1}, 32, v{row}
    v_mov_b32 v{m}, 0xff7fffff
    v_mov_b32 v{m+1}, 0xff7fffff
    v_mov_b32 v{kv}, 0xff800000
    s_mul_i32 s{sT0}, s{sH}, {HS}
    s_add_u32 s{sT1}, s{sT0}, {VF}
    s_add_u32 s{sT0}, s{sT0}, {KF}
    s_lshl_b32 s{sT2}, s{sQb}, 2
    s_add_u32 s{sT2}, s{sT2}, 4
    ''')
    T(Ll + ':')
    for k in range(8):
        T(f'buffer_load_dwordx4 {R("a", KR + 4 * k)}, v{vLin if k < 4 else vLin2}, {srd(WS)}, s{sT0} offen offset:{(k & 3) * 1024} sc1')
    for k in range(8):
        T(f'buffer_load_dwordx4 {R("a", VR + 4 * k)}, v{vLin if k < 4 else vLin2}, {srd(WS)}, s{sT1} offen offset:{(k & 3) * 1024} sc1')
    T('s_waitcnt vmcnt(0)')
    for p in range(2):
        for kb in range(2):
            for ds in range(4):
                T(mfma(R('v', s0 + p * 8 + kb * 4), R('a', KR + (kb * 4 + ds) * 4), R('a', QA + p * 16 + ds * 4), '0' if ds == 0 else None))
    T('s_nop 7')
    for p in range(2):
        s = s0 + p * 8
        for e in range(8):
            T(f'v_cmp_le_i32 vcc, {16 * (e >> 2) + (e & 3)}, v{row + p}')
            T('s_nop 1')
            T(f'v_cndmask_b32 v{s + e}, v{kv}, v{s + e}, vcc')
        T(f'v_max3_f32 v{t0}, v{s}, v{s+1}, v{m + p}')
        for e in range(2, 8, 2):
            T(f'v_max3_f32 v{t0}, v{s + e}, v{s + e + 1}, v{t0}')
        for sw in ('v_permlane32_swap_b32', 'v_permlane16_swap_b32'):
            T(f'v_mov_b32 v{t1}, v{t0}')
            T('s_nop 1')
            T(f'{sw} v{t0}, v{t1}')
            T('s_nop 1')
            T(f'v_max_f32 v{t0}, v{t0}, v{t1}')
        T(f'v_sub_f32 v{al}, v{m + p}, v{t0}')
        T(f'v_exp_f32 v{al}, v{al}')
        T(f'v_mov_b32 v{m + p}, v{t0}')
        for e in range(8):
            T(f'v_sub_f32 v{s + e}, v{s + e}, v{t0}')
            T(f'v_exp_f32 v{s + e}, v{s + e}')
        for k in range(32):
            T(f'v_mul_f32 v{O_ + p * 32 + k}, v{al}, v{O_ + p * 32 + k}')
        for k in range(4):
            T(f'v_mul_f32 v{L_ + 4 * p + k}, v{al}, v{L_ + 4 * p + k}')
            T(f'v_cvt_pk_bf16_f32 v{pp + 4 * p + k}, v{s + 2 * k}, v{s + 2 * k + 1}')
        T(f'v_subrev_u32 v{row + p}, 32, v{row + p}')
    T('s_nop 1')
    for p in range(2):
        for db in range(8):
            T(mfma(Oreg(db, p), R('a', VR + 4 * db), R('v', pp + 4 * p)))
        T(mfma(R('v', L_ + 4 * p), R('v', vOnes), R('v', pp + 4 * p)))
    T(f'''
    s_add_u32 s{sT0}, s{sT0}, 8192
    s_add_u32 s{sT1}, s{sT1}, 8192
    s_sub_u32 s{sT2}, s{sT2}, 1
    s_nop 7
    s_cmp_lg_u32 s{sT2}, 0
    s_cbranch_scc1 {Ll}
    s_branch {Lb}
    ''')


def finalize(g):
    A = g.A
    t = vT
    A('s_nop 4')
    for k in range(16):
        A(f'ds_write_b128 v{vXw}, {R("a", OS + 4 * k)} offset:{k * 1024}')
    A(f'ds_write_b32 v{vLw}, v{L_ + 8}')
    A(f'ds_write_b32 v{vLw}, v{L_ + 12} offset:256')
    for k in range(32, 64):
        A(f'v_accvgpr_mov_b32 a{QA + k}, a{QB + k}')
    A(WAIT(vm=True, lg=True))
    A('s_barrier')
    A(f'ds_read_b32 v{t}, v{vLr}')
    A(f'ds_read_b32 v{t + 1}, v{vLr} offset:256')
    for k in range(16):
        A(f'ds_read_b128 {R("v", S_ + 4 * k)}, v{vXr} offset:{k * 1024}')
    A(WAIT(lg=True))
    A(f'v_add_f32 v{L_}, v{L_}, v{t}')
    A(f'v_add_f32 v{L_ + 4}, v{L_ + 4}, v{t + 1}')
    A(f'v_max_f32 v{t}, v{L_}, v{L_ + 4}')
    A(f'v_min_f32 v{t + 1}, v{L_}, v{L_ + 4}')
    A(f'v_cmp_u_f32 s[{sEx0}:{sEx1}], v{L_}, v{L_ + 4}')
    A(f'v_cmp_nge_f32 vcc, {L_HI}, v{t}')
    A(f's_or_b64 s[{sEx0}:{sEx1}], s[{sEx0}:{sEx1}], vcc')
    A(f'v_cmp_nle_f32 vcc, {L_LO}, v{t + 1}')
    A(f's_or_b64 vcc, s[{sEx0}:{sEx1}], vcc')
    Ls, Lb = g.lab('slow'), g.lab('slowback')
    if g.o.get('forceslow'):
        A(f's_branch {Ls}')
    A(f's_cbranch_vccnz {Ls}', taken='slow')
    A(Lb + ':')
    slow_path(g, Ls, Lb)
    A(f'v_rcp_f32 v{vSc0}, v{L_}')
    A(f'v_rcp_f32 v{vSc1}, v{L_ + 4}')
    L4, L4b = g.lab('p4pre'), g.lab('p4preback')
    A(f's_cmp_lg_u32 s{sBlk}, 0')
    A(f's_cbranch_scc1 {L4}')
    A(f's_cmp_eq_u32 s{sI}, 0')
    A(f's_cselect_b32 s{sT0}, 8192, 0')
    A(f'v_xor_b32 v{vSw}, s{sT0}, v{vK}')
    A(rd(VR, vK, 0))
    A(rd(KR, vSw, 16384))
    for k in range(32):
        A(f'v_accvgpr_mov_b32 a{QA + k}, a{QB + k}')
    A(L4b + ':')
    g.tail(L4 + ':')
    if g.stop > 3:
        p4_pre(g, g.tail)
    g.tail(f's_branch {L4b}')
    A(WAIT(vm=True, lg=True))
    A(f'v_mul_f32 v{vSc0}, v{vSc0}, v{vG}')
    A(f'v_mul_f32 v{vSc1}, v{vSc1}, v{vG + 1}')
    for ds in range(4):
        for p in range(2):
            o, s = O_ + p * 32 + ds * 8, S_ + p * 32 + ds * 8
            sc = R('v', vSc1 if p else vSc0, 2)
            for k in range(0, 8, 2):
                A(f'v_pk_add_f32 {R("v", o + k, 2)}, {R("v", o + k, 2)}, {R("v", s + k, 2)}')
            for k in range(0, 8, 2):
                A(f'v_pk_mul_f32 {R("v", o + k, 2)}, {R("v", o + k, 2)}, {sc} op_sel_hi:[1_0]')
            for k in range(4):
                A(f'v_cvt_pk_bf16_f32 v{s + k}, v{o + 2 * k}, v{o + 2 * k + 1}')
            A(f'buffer_store_dwordx4 {R("v", s)}, v{vLin}, {srd(WS)}, s{sCtx} offen offset:{p * 1024} sc1', tag='ctx')
        if ds < 3:
            A(f's_add_u32 s{sCtx}, s{sCtx}, 4096')


def attention(g):
    A = g.A
    A('L_block:')
    G = prologue(g)
    g.emit(G, 'pro')
    G = stage(g, 0, first=True)
    G.seq([f's_cmp_eq_u32 s{sCnt}, 0', 's_cbranch_scc1 L_aexit'], 67, 67)
    g.emit(G, 'st0')
    A('L_aloop:')
    G = stage(g, 1)
    G.put(1, f's_sub_u32 s{sCnt}, s{sCnt}, 1')
    g.emit(G, 'loop')
    G = stage(g, 0, bar_after=('p2',))
    G.seq([f's_cmp_lg_u32 s{sCnt}, 0', 's_cbranch_scc1 L_aloop'], 67, 67)
    g.emit(G, 'loop')
    A('L_aexit:')
    A(f's_cmp_lg_u32 s{sPend}, 0')
    A('s_cbranch_scc1 L_pend')
    T = g.tail
    T('L_pend:')
    T(f's_mov_b32 s{sPend}, 0')
    T(f's_sub_u32 s{sCnt}, s{sQb}, 2')
    T(f's_cmp_lg_u32 s{sWv}, 0')
    T('s_cbranch_scc1 L_aloop')
    T(f'v_mov_b32 v{vT}, 1')
    T('s_mov_b64 exec, 1')
    T(f'buffer_atomic_add v{vT}, off, {srd(DBG)}, 0 offset:4 sc1')
    T('s_mov_b64 exec, -1')
    T('s_branch L_aloop')
    A(block_scalars())
    A(f's_cmp_lg_u32 s{sHF}, 0')
    A('s_cbranch_scc1 L_diag1')
    g.emit(d1(g, 0), 'd1_0')
    g.emit(d2(g, 0), 'd2_0')
    A('L_fin:')
    g.stamp('5')
    finalize(g)
    g.stamp('6')
    A(f's_cmp_lg_u32 s{sBlk}, 0')
    A('s_cbranch_scc1 L_adone')
    A(f'''
    s_mov_b32 s{sBlk}, 1
    s_mov_b32 s{sQb}, s{sI}
    s_mov_b32 s{sPar}, 0
    s_mov_b32 s{KV + 2}, s{sLim}
    s_sub_u32 s{sCnt}, s{sI}, 1
    s_cmp_lg_u32 s{sI}, 0
    s_cbranch_scc1 L_block
    s_branch L_q0
    ''')
    save = g.A
    g.A = B = Asm()
    B('L_diag1:')
    g.emit(d1(g, 1), 'd1_1')
    g.emit(d2(g, 1), 'd2_1')
    B('s_branch L_fin')
    B('L_q0:')
    B(block_scalars())
    B(f's_cmp_lg_u32 s{sHF}, 0')
    B('s_cbranch_scc1 L_q01')
    g.emit(pro0(g, 0), 'q0')
    g.emit(d2(g, 0, True), 'q0')
    B('s_branch L_fin')
    B('L_q01:')
    g.emit(pro0(g, 1), 'q0')
    g.emit(d2(g, 1, True), 'q0')
    B('s_branch L_fin')
    g.A = save
    A.ins += B.ins
    A('L_adone:')


ACC, ND = 144, 4
vG4, vPa4, vOa = 224, 228, 229
ring = lambda n: (n % ND) * 36


def p4_loads(n):
    b = ring(n)
    o = [f'buffer_load_dwordx4 {R("a", b + 4 * u)}, v{vLin}, {srd(WS)}, s{sAo} offen offset:{u * 1024} sc1' for u in range(4)]
    o += [f'buffer_load_dwordx4 {R("a", b + 16 + 4 * k)}, v{vLin if k < 4 else vLin2}, {srd(WS)}, s{sWo} offen offset:{(k & 3) * 1024} sc1' for k in range(5)]
    return o


def p4_adv(n):
    o = [f's_add_u32 s{sAo}, s{sAo}, {4 * 4096}', f's_add_u32 s{sWo}, s{sWo}, {4 * 40960}']
    if n + 1 == 13:
        o += [f's_mul_i32 s{sT0}, s{sHF}, {OOB}', f's_add_u32 s{sAo}, s{sAo}, s{sT0}', f's_add_u32 s{sWo}, s{sWo}, s{sT0}']
    if n + 1 == 14:
        o = [f's_add_u32 s{sAo}, s{sAo}, {2 * 4096}', f's_add_u32 s{sWo}, s{sWo}, {2 * 40960}',
             f's_sub_u32 s{sAo}, s{sAo}, s{sT0}', f's_sub_u32 s{sWo}, s{sWo}, s{sT0}']
    return o


def p4_pre(g, T):
    sRt, sCt = sX0, sX1
    T(f'''
    s_and_b32 s{sT0}, s2, 6
    s_lshl_b32 s{sT0}, s{sT0}, 2
    s_lshr_b32 s{sT1}, s2, 5
    s_add_u32 s{sRt}, s{sT0}, s{sT1}
    s_and_b32 s{sT0}, s2, 1
    s_lshl_b32 s{sT0}, s{sT0}, 2
    s_lshr_b32 s{sT1}, s2, 3
    s_and_b32 s{sT1}, s{sT1}, 3
    s_add_u32 s{sCt}, s{sT0}, s{sT1}
    s_mul_i32 s{sAo}, s{sRt}, {AF_RT}
    s_add_u32 s{sAo}, s{sAo}, s{sW4k}
    s_add_u32 s{sAo}, s{sAo}, {AF}
    s_mul_i32 s{sWo}, s{sWv}, 40960
    s_mul_i32 s{sT0}, s{sCt}, 5120
    s_add_u32 s{sWo}, s{sWo}, s{sT0}
    s_add_u32 s{sWo}, s{sWo}, {WF}
    ''')
    for n in range(ND):
        T(p4_loads(n))
        T(p4_adv(n))


def p4_step(g, n, load=True, first=False):
    b = ring(n)
    mf = [mfma(R('v', ACC + (u * 5 + k) * 4), R('a', b + 16 + 4 * k), R('a', b + 4 * u), '0' if first else None) for u in range(4) for k in range(5)]
    G = Gaps(mf)
    G.put(-1, WAIT(vm=True))
    if load:
        ld = p4_loads(n + ND)
        for u in range(4):
            G.put(5 * u + 4, ld[u])
        for k in range(5):
            G.put(15 + k, ld[4 + k])
        for x in p4_adv(n + ND):
            G.put(19, x)
    return G


def phase4(g):
    A = g.A
    sRt, sCt = sX0, sX1
    extra = {}
    extra[0] = [f's_lshr_b32 s{sT1}, s{sRt}, 1', f's_lshl_b32 s{sT3}, s{sT1}, 9', f's_and_b32 s{sT2}, s{sRt}, 1', f's_lshl_b32 s{sT2}, s{sT2}, 6',
                f's_add_u32 s{sT3}, s{sT3}, s{sT2}', f's_add_u32 s{sT3}, s{sT3}, {GG}']
    extra[1] = [f'buffer_load_dword v{vG4 + u}, v{vGa}, {srd(WS)}, s{sT3} offen offset:{u * 128} sc1' for u in range(4)]
    extra[2] = [f's_sub_u32 s{sT3}, 15, s{sT1}', f's_min_u32 s{sT1}, s{sT1}, s{sT3}', f's_lshl_b32 s{sT1}, s{sT1}, 12',
                f's_lshr_b32 s{sT2}, s{sT2}, 4', f's_add_u32 s{sT1}, s{sT1}, s{sT2}', f's_add_u32 s{sT3}, s{sT1}, {FL}',
                f'v_lshrrev_b32 v{vPa4}, 1, v{vLane}', f'v_lshlrev_b32 v{vPa4}, 7, v{vPa4}', f'v_and_b32 v{vT}, 1, v{vLane}',
                f'v_lshl_add_u32 v{vPa4}, v{vT}, 3, v{vPa4}']
    fl = int(g.o.get('p4flag', 3))
    extra.setdefault(fl, [])
    extra[fl] += g.set_flag(2, ('ctx',))
    ld = f'buffer_load_dword v{vP}, v{vPa4}, {srd(WS)}, s{sT3} offen sc1'
    extra[8] = [ld]
    extra[9] = [WAIT(vm=True)] + [f'v_sub_f32 v{vG4 + u}, 1.0, v{vG4 + u}' for u in range(4)]
    for n in range(14):
        G = p4_step(g, n, first=(n == 0))
        if n == 10:
            G.seq(g.spin(ld, f'v_cmp_gt_u32 vcc, 2, v{vP}', 'ctx'), 0, 3)
        if n in extra:
            G.seq(extra[n], 0, 14)
        g.emit(G, 'p4a')
    g.stamp(9)
    A(f's_mov_b32 s{sCnt}, 7')
    A('s_nop 6')
    for u in range(4):
        for k in range(20):
            A(f'v_mul_f32 v{ACC + u * 20 + k}, v{vG4 + u}, v{ACC + u * 20 + k}')
    A('L_p4loop:')
    for n in range(14, 18):
        G = p4_step(g, n)
        if n == 14:
            G.put(0, f's_sub_u32 s{sCnt}, s{sCnt}, 1')
        if n == 17:
            G.seq([f's_cmp_lg_u32 s{sCnt}, 0', 's_cbranch_scc1 L_p4loop'], 19, 19)
        g.emit(G, 'p4b')
    for n in range(42, 46):
        G = p4_step(g, n, load=False)
        if n == 42:
            G.seq([f's_mul_i32 s{sT0}, s{sWv}, 20480', f'v_add_u32 v{vXw}, s{sT0}, v{vLin}', f's_mul_i32 s{sT0}, s{sWv}, 5120',
                   f'v_add_u32 v{vXr}, s{sT0}, v{vLin}', f'v_add_u32 v{vLr}, 40960, v{vXr}',
                   f's_lshr_b32 s{sT0}, s{sRt}, 1', f's_lshl_b32 s{sT0}, s{sT0}, 3', f's_and_b32 s{sT1}, s{sRt}, 1', f's_add_u32 s{sT0}, s{sT0}, s{sT1}',
                   f's_lshl_b32 s{sT1}, s{sWv}, 1', f's_add_u32 s{sT0}, s{sT0}, s{sT1}', f's_mul_i32 s{sT0}, s{sT0}, {16 * 1280}',
                   f's_mul_i32 s{sT1}, s{sCt}, 160', f's_add_u32 s{sT0}, s{sT0}, s{sT1}',
                   f'v_mul_u32_u24 v{vOa}, 320, v{vGa}', f'v_lshrrev_b32 v{vT}, 4, v{vLane}', f'v_lshl_add_u32 v{vOa}, v{vT}, 3, v{vOa}'], 0, 19)
        if n == 43:
            G.seq([f's_mov_b32 s{TS}, s{P(11)[0]}', f's_and_b32 s{TS+1}, s{P(11)[1]}, 0xffff', f's_mov_b32 s{TS+2}, {2048 * 1280}',
                   WAIT(vm=True, lg=True), 's_barrier'], 0, 19)
        g.emit(G, 'p4c')
    g.stamp(10)
    A('s_nop 2')
    for k in range(20):
        A(f'ds_write_b128 v{vXw}, {R("v", ACC + 4 * k)} offset:{k * 1024}')
    A(WAIT(lg=True))
    A('s_barrier')
    for w in range(4):
        for k in range(5):
            A(f'ds_read_b128 {R("v", 32 + w * 20 + 4 * k)}, v{vXr if w < 2 else vLr} offset:{(w & 1) * 20480 + k * 1024}')
    for w in range(1, 4):
        A(WAIT(lg=True))
        for k in range(0, 20, 2):
            A(f'v_pk_add_f32 {R("v", 32 + k, 2)}, {R("v", 32 + k, 2)}, {R("v", 32 + w * 20 + k, 2)}')
    for k in range(5):
        A(f'v_cvt_pk_bf16_f32 v{112 + 2 * k}, v{32 + 4 * k}, v{33 + 4 * k}')
        A(f'v_cvt_pk_bf16_f32 v{113 + 2 * k}, v{34 + 4 * k}, v{35 + 4 * k}')
        A(f'buffer_store_dwordx2 {R("v", 112 + 2 * k, 2)}, v{vOa}, {srd(TS)}, s{sT0} offen offset:{k * 32}')
    g.stamp(11)
```

```python
import sys, math
from asmlib import *

NAME = 'gated_mix__compressed_kv_cla__dense_activation_mish__prompt'
KNAME = NAME + '_kernel'
LDS = 163840

HS = 512 * 1024 + 8192
KF = 0x0010000
VF = 0x1100000
AF = 0x2200000
AF_RT = 182 * 4096
WF = 0x3900000
GG = 0x4100000
FL = 0x4110000
DUMP = 0x4200000
WS_BYTES = 0x8000000
OOB = 0x7ff00000

P = lambda k: (64 + 2 * k, 65 + 2 * k)
C1, W1S, WS, DBG, TS, C2, W2S = 8, 12, 16, 20, 24, 28, 32
srd = lambda b: 's[%d:%d]' % (b, b + 3)
sH, sI, sWv, sR, sHF, sW4k = 36, 37, 38, 39, 40, 41
sT0, sT1, sT2, sT3 = 3, 4, 5, 6
sWT, sWso, sCbuf, sCd, sCso0, sCso1, sCnt = 42, 43, 44, 45, 46, 47, 48
sX0, sX1, sW2so, sW2st, sKst, sVst, sFlag = 49, 50, 51, 52, 53, 54, 55
sSrc, sEnd, sNext, sMT, sBlk, sQb, sCtx = 56, 57, 58, 59, 60, 61, 62
sSpin, sAo, sWo, sWtS, sWtD = 63, 92, 93, 94, 95
sScale, sEx0, sEx1 = 96, 98, 99
sStamp = 100

vLin, vLane = 0, 1
vCo, vWo, vCb, vCr, vWr, vW1r, vCo2, vWo2, vCb2 = 2, 6, 10, 12, 13, 17, 19, 23, 27
vT = 29
vBias = 32
vTmp = 40

CSCALE = math.log2(math.e) / math.sqrt(128.0)
LOG2E = math.log2(math.e)
f32 = lambda x: '0x%08x' % int(np.float32(x).view(np.uint32))


def R(f, b, n=4):
    return '%s[%d:%d]' % (f, b, b + n - 1) if n > 1 else '%s%d' % (f, b)


def mfma(d, a, b, c=None):
    return 'v_mfma_f32_16x16x32_bf16 %s, %s, %s, %s' % (d, a, b, d if c is None else c)


def mk_srd(A, q, ptr, nbytes):
    A('s_mov_b32 s%d, s%d' % (q, ptr[0]))
    A('s_and_b32 s%d, s%d, 0xffff' % (q + 1, ptr[1]))
    A('s_mov_b32 s%d, %d' % (q + 2, nbytes))
    A('s_mov_b32 s%d, 0x20000' % (q + 3))


class Gen:
    def __init__(self, stop=99, stamps=False, opts=None):
        self.A = Asm()
        self.tail = Asm()
        self.stop = stop
        self.stamps = stamps
        self.o = opts or {}
        self.nlab = 0
        self.nstamp = 0
        self.ovf = {}

    def lab(self, base):
        self.nlab += 1
        return 'L_%s_%d' % (base, self.nlab)

    def emit(self, G, name):
        self.ovf[name] = self.ovf.get(name, 0) + G.overflow()
        G.emit(self.A)

    def stamp(self, k):
        if not self.stamps:
            return
        A = self.A
        A('s_waitcnt lgkmcnt(0)')
        A('s_memtime s[%d:%d]' % (sStamp, sStamp + 1))
        A('s_waitcnt lgkmcnt(0)')
        A('v_mov_b32 v%d, s%d' % (vT + 1, sStamp))
        A('s_memrealtime s[%d:%d]' % (sStamp, sStamp + 1))
        A('s_waitcnt lgkmcnt(0)')
        A('v_mov_b32 v%d, s%d' % (vT + 2, sStamp))
        A('s_lshl_b32 s%d, s2, 2' % sStamp)
        A('s_add_u32 s%d, s%d, s%d' % (sStamp, sStamp, sWv))
        A('s_lshl_b32 s%d, s%d, 8' % (sStamp, sStamp))
        if isinstance(k, str):
            A('s_lshl_b32 s%d, s%d, 4' % (sStamp + 1, sBlk))
            A('s_add_u32 s%d, s%d, s%d' % (sStamp, sStamp, sStamp + 1))
            k = int(k)
        A('s_add_u32 s%d, s%d, %d' % (sStamp, sStamp, DUMP + 0x2000000 + 8 * k))
        A('s_mov_b64 exec, 1')
        A('buffer_store_dwordx2 v[%d:%d], off, %s, s%d' % (vT + 1, vT + 2, srd(WS), sStamp))
        A('s_mov_b64 exec, -1')

    def init(self):
        A = self.A
        A('s_cmp_ge_u32 s2, 256')
        A('s_cbranch_scc1 L_exit')
        A('s_load_dwordx16 s[64:79], s[0:1], 0')
        A('s_load_dwordx8 s[80:87], s[0:1], 64')
        A('s_load_dwordx4 s[88:91], s[0:1], 96')
        if self.stamps:
            A(f's_memrealtime s[{sEx0}:{sEx1}]')
        A(f'''
        v_lshrrev_b32 v{vT}, 6, v0
        v_and_b32 v{vLane}, 63, v0
        v_readfirstlane_b32 s{sWv}, v{vT}
        v_lshlrev_b32 v{vLin}, 4, v{vLane}
        s_and_b32 s{sT0}, s2, 7
        s_lshl_b32 s{sT0}, s{sT0}, 2
        s_lshr_b32 s{sT1}, s2, 3
        s_and_b32 s{sT1}, s{sT1}, 3
        s_add_u32 s{sH}, s{sT0}, s{sT1}
        s_lshr_b32 s{sI}, s2, 5
        s_and_b32 s{sR}, s{sWv}, 1
        s_lshr_b32 s{sHF}, s{sWv}, 1
        s_lshl_b32 s{sW4k}, s{sWv}, 12
        ''')
        t0, t1, t2, t3, t4, t5 = range(vTmp, vTmp + 6)
        A(f'''
        v_lshrrev_b32 v{t0}, 3, v{vLane}
        v_and_b32 v{t1}, 7, v{vLane}
        v_lshrrev_b32 v{t2}, 4, v{vLane}
        v_and_b32 v{t3}, 15, v{vLane}
        ''')
        A(f's_lshl_b32 s{sT0}, s{sWv}, 5')
        A(f'v_add_u32 v{t4}, s{sT0}, v{t0}')
        A(f'v_xor_b32 v{t5}, v{t1}, v{t2}')
        for j in range(4):
            A(f'v_lshlrev_b32 v{vCo+j}, 10, v{t4}')
            A(f'v_xor_b32 v{vT}, {(j & 1) * 4}, v{t5}')
            A(f'v_lshl_add_u32 v{vCo+j}, v{vT}, 4, v{vCo+j}')
            if j:
                A(f'v_add_u32 v{vCo+j}, {j * (8192 - 1024)}, v{vCo+j}')
        A(f's_lshl_b32 s{sT0}, s{sR}, 17')
        A(f's_lshl_b32 s{sT1}, s{sH}, 8')
        A(f's_add_u32 s{sT0}, s{sT0}, s{sT1}')
        for j in range(4):
            A(f'v_lshlrev_b32 v{vT}, 1, v{t2}')
            A(f'v_xor_b32 v{vT}, v{vT}, v{t3}')
            A(f'v_xor_b32 v{vT}, {(j >> 1) * 8}, v{vT}')
            A(f'v_lshlrev_b32 v{vT}, 4, v{vT}')
            A(f'v_lshl_add_u32 v{vWo+j}, v{t2}, 13, v{vT}')
            A(f'v_add_u32 v{vWo+j}, s{sT0}, v{vWo+j}')
            if j:
                A(f'v_add_u32 v{vWo+j}, {j * (32768 - 1024)}, v{vWo+j}')
        A('s_waitcnt lgkmcnt(0)')
        mk_srd(A, WS, P(13), WS_BYTES)
        mk_srd(A, C1, P(1), 2048 * 512 * 2)
        A(f's_cmp_eq_u32 s{sHF}, 0')
        A(f's_cselect_b32 s{W1S}, s{P(3)[0]}, s{P(4)[0]}')
        A(f's_cselect_b32 s{W1S+1}, s{P(3)[1]}, s{P(4)[1]}')
        A(f's_and_b32 s{W1S+1}, s{W1S+1}, 0xffff')
        A(f's_mov_b32 s{W1S+2}, {512 * 4096 * 2}')
        A(f's_mov_b32 s{W1S+3}, 0x20000')
        A(f'''
        s_lshl_b32 s{sT0}, s{sI}, 5
        s_add_u32 s{sT0}, s{sT0}, s{sH}
        s_lshl_b32 s{sT0}, s{sT0}, 7
        s_lshl_b32 s{sT1}, s{sWv}, 2
        s_add_u32 s{sT0}, s{sT0}, s{sT1}
        s_add_u32 s{sFlag}, s{sT0}, {FL}
        v_mov_b32 v{vT}, 0
        ''')
        A(f'buffer_store_dword v{vT}, off, {srd(WS)}, s{sFlag} sc1', tag='zero')
        A(f's_lshl_b32 s{sCso0}, s{sI}, 18')
        A(f's_add_u32 s{sCso1}, s{sCso0}, {128 * 1024}')
        A(f's_mov_b32 s{sWso}, 0')

        def cgrp(pair, half):
            A(f's_add_u32 m0, s{sW4k}, {65536 + (pair % 3) * 32768 + half * 16384}')
            so = sCso1 if half else sCso0
            A('s_nop 0')
            for j in range(4):
                A(f'buffer_load_dwordx4 v{vCo+j}, {srd(C1)}, s{so} offen offset:{j*1024} lds')
            A(f's_add_u32 s{so}, s{so}, 128')

        def wgrp(s):
            A(f's_add_u32 m0, s{sW4k}, {(s % 4) * 16384}')
            A('s_nop 0')
            for j in range(4):
                A(f'buffer_load_dwordx4 v{vWo+j}, {srd(W1S)}, s{sWso} offen offset:{j*1024} lds')
            A(f's_add_u32 s{sWso}, s{sWso}, {32 * 8192}')
        cgrp(0, 0); cgrp(0, 1); wgrp(0); wgrp(1); cgrp(1, 0); cgrp(1, 1); wgrp(2); wgrp(3); cgrp(2, 0)

        mk_srd(A, DBG, P(12), 256)
        mk_srd(A, C2, P(0), 2048 * 640 * 2)
        mk_srd(A, TS, P(8), 1728 * 2)
        A(f'''
        s_lshl_b32 s{sT0}, s{sH}, 7
        s_lshl_b32 s{sT1}, s{sHF}, 6
        s_add_u32 s{sT0}, s{sT0}, s{sT1}
        v_lshlrev_b32 v{vT}, 3, v{t2}
        ''')
        A(f'buffer_load_dwordx2 v[{vBias}:{vBias+1}], v{vT}, {srd(TS)}, s{sT0} offen')
        A(f'buffer_load_dwordx2 v[{vBias+4}:{vBias+5}], v{vT}, {srd(TS)}, s{sT0} offen offset:32')
        A(f'''
        v_lshrrev_b32 v{vT}, 1, v{t3}
        v_xor_b32 v{vT}, v{vT}, v{t2}
        v_lshlrev_b32 v{vT}, 4, v{vT}
        v_lshl_add_u32 v{vT}, v{t3}, 7, v{vT}
        s_lshl_b32 s{sT0}, s{sR}, 14
        s_lshl_b32 s{sT1}, s{sR}, 11
        v_add_u32 v{vCb}, s{sT0}, v{vT}
        v_xor_b32 v{vCb+1}, 64, v{vCb}
        v_add_u32 v{vCb2}, s{sT1}, v{vT}
        v_xor_b32 v{vCb2+1}, 64, v{vCb2}
        ''')
        q2, k8, hk, c8 = range(vTmp + 6, vTmp + 10)
        A(f'''
        v_lshrrev_b32 v{q2}, 2, v{t3}
        v_lshl_add_u32 v{k8}, v{t2}, 3, v{q2}
        v_and_b32 v{vT}, 1, v{t2}
        v_lshl_add_u32 v{hk}, v{vT}, 2, v{q2}
        v_and_b32 v{c8}, 3, v{t3}
        v_lshlrev_b32 v{c8}, 3, v{c8}
        s_lshl_b32 s{sT0}, s{sHF}, 2
        ''')
        for c in range(4):
            A(f's_add_u32 s{sT1}, s{sT0}, {c}')
            A(f'v_xor_b32 v{vT}, s{sT1}, v{hk}')
            A(f'v_lshl_add_u32 v{vT}, v{vT}, 5, v{c8}')
            A(f'v_lshl_add_u32 v{vWr+c}, v{k8}, 8, v{vT}')
        A(f'''
        v_and_b32 v{vT}, 1, v{t2}
        v_lshrrev_b32 v{hk}, 3, v{t3}
        v_lshl_add_u32 v{hk}, v{vT}, 1, v{hk}
        s_lshl_b32 s{sT0}, s{sHF}, 1
        ''')
        for c in range(2):
            A(f's_add_u32 s{sT1}, s{sT0}, {c}')
            A(f'v_xor_b32 v{vT}, s{sT1}, v{hk}')
            A(f'v_lshl_add_u32 v{vT}, v{vT}, 5, v{c8}')
            A(f'v_lshl_add_u32 v{vW1r+c}, v{k8}, 7, v{vT}')
        for j in range(4):
            A(f'v_mul_u32_u24 v{vCo2+j}, 1280, v{t4}')
            A(f'v_xor_b32 v{vT}, {(j & 1) * 4}, v{t5}')
            A(f'v_lshl_add_u32 v{vCo2+j}, v{vT}, 4, v{vCo2+j}')
            if j:
                A(f'v_add_u32 v{vCo2+j}, {j * (8 * 1280 - 1024)}, v{vCo2+j}')
        A(f'''
        s_sub_u32 s{sT0}, 15, s{sI}
        s_mul_i32 s{sX0}, s{sT0}, {128 * 1280}
        s_mul_i32 s{sX1}, s{sI}, {128 * 1280}
        s_mov_b32 s{sW2so}, 0
        ''')
        Lq, Ld, Lg = self.lab('w2q'), self.lab('w2done'), self.lab('w2gate')
        mk_srd(A, W2S, P(2), 640 * 4096 * 2)
        A(f's_mov_b32 s{sW2st}, {32 * 8192}')
        for j in range(4):
            A(f'v_mov_b32 v{vWo2+j}, v{vWo+j}')
        A(f's_cmp_lt_u32 s{sWv}, 2')
        A(f's_cbranch_scc1 {Ld}')
        A(f's_mov_b32 s{W2S+2}, 0')
        A(f's_cmp_eq_u32 s{sWv}, 3')
        A(f's_cbranch_scc1 {Ld}')
        A(f's_cmp_gt_u32 s{sH}, 27')
        A(f's_cbranch_scc1 {Ld}')
        A(f'v_and_b32 v{q2}, 1, v{t2}')
        A(f'v_lshlrev_b32 v{q2}, 1, v{q2}')
        A(f'v_xor_b32 v{q2}, v{q2}, v{t1}')
        A(f's_cmp_eq_u32 s{sH}, 27')
        A(f's_cbranch_scc1 {Lg}')
        A(f's_mov_b32 s{W2S}, s{P(7)[0]}')
        A(f's_and_b32 s{W2S+1}, s{P(7)[1]}, 0xffff')
        A(f's_mov_b32 s{W2S+2}, {640 * 1728 * 2}')
        A(f's_mov_b32 s{sW2st}, {32 * 3456}')
        A(f's_lshl_b32 s{sT0}, s{sH}, 7')
        for j in range(4):
            A(f'v_mul_u32_u24 v{vWo2+j}, 3456, v{t0}')
            A(f'v_xor_b32 v{vT}, {(j & 1) * 4}, v{q2}')
            A(f'v_lshl_add_u32 v{vWo2+j}, v{vT}, 4, v{vWo2+j}')
            A(f's_add_u32 s{sT1}, s{sT0}, {j * (8 * 3456 - 1024)}')
            A(f'v_add_u32 v{vWo2+j}, s{sT1}, v{vWo2+j}')
        A(f's_branch {Ld}')
        A(Lg + ':')
        A(f's_sub_u32 s{W2S}, s{P(10)[0]}, 4096')
        A(f's_subb_u32 s{W2S+1}, s{P(10)[1]}, 0')
        A(f's_and_b32 s{W2S+1}, s{W2S+1}, 0xffff')
        A(f's_mov_b32 s{W2S+2}, {4096 + 1280}')
        A(f's_mov_b32 s{sW2st}, 64')
        A(f'v_and_b32 v{k8}, 1, v{t0}')
        A(f'v_and_b32 v{hk}, 6, v{t0}')
        A(f'v_lshlrev_b32 v{hk}, 1, v{hk}')
        A(f'v_mov_b32 v{c8}, {OOB}')
        for j in range(4):
            A(f'v_xor_b32 v{vT}, {(j & 1) * 4}, v{q2}')
            A(f'v_cmp_eq_u32 vcc, v{vT}, v{k8}')
            A(f'v_add_u32 v{vT}, {4096 + 16 * j - 1024 * j}, v{hk}')
            A('s_nop 0')
            A(f'v_cndmask_b32 v{vWo2+j}, v{c8}, v{vT}, vcc')
        A(Ld + ':')
        A(f'''
        s_mul_i32 s{sT0}, s{sH}, {HS}
        s_lshl_b32 s{sT1}, s{sI}, 16
        s_add_u32 s{sT0}, s{sT0}, s{sT1}
        s_lshl_b32 s{sT1}, s{sR}, 15
        s_add_u32 s{sT0}, s{sT0}, s{sT1}
        s_lshl_b32 s{sT1}, s{sHF}, 11
        s_add_u32 s{sKst}, s{sT0}, s{sT1}
        s_add_u32 s{sKst}, s{sKst}, {KF}
        s_lshl_b32 s{sT1}, s{sHF}, 12
        s_add_u32 s{sVst}, s{sT0}, s{sT1}
        s_add_u32 s{sVst}, s{sVst}, {VF}
        s_mov_b32 s{sScale}, {f32(CSCALE)}
        s_mov_b32 s{sScale+1}, {f32(CSCALE)}
        ''')
        vWt, vWtr = vTmp + 16, vTmp + 18
        prep = [f's_lshl_b32 s{sT0}, s2, 2', f's_add_u32 s{sT0}, s{sT0}, s{sWv}',
                f's_mul_hi_u32 s{sT1}, s{sT0}, {(2**32 + 4) // 5}',
                f's_mul_i32 s{sWtD}, s{sT1}, 5', f's_sub_u32 s{sT0}, s{sT0}, s{sWtD}',
                f's_mul_i32 s{sWtD}, s{sT1}, 40960', f's_lshl_b32 s{sWtS}, s{sT0}, 13',
                f's_add_u32 s{sWtD}, s{sWtD}, s{sWtS}', f's_add_u32 s{sWtD}, s{sWtD}, {WF}',
                f's_cmp_lt_u32 s{sT1}, 182', f's_cselect_b32 s{sWtD}, s{sWtD}, {OOB}',
                f's_cmp_lt_u32 s{sT1}, 54',
                f's_cselect_b32 s{TS}, s{P(9)[0]}, s{P(5)[0]}', f's_cselect_b32 s{TS+1}, s{P(9)[1]}, s{P(5)[1]}',
                f's_mov_b32 s{TS+2}, {4096 * 1280}', f's_cselect_b32 s{TS+2}, {1728 * 1280}, s{TS+2}', f's_cselect_b32 s{sWtS}, 0, 54',
                f's_and_b32 s{TS+1}, s{TS+1}, 0xffff',
                f's_sub_u32 s{sT1}, s{sT1}, s{sWtS}', f's_mul_i32 s{sWtS}, s{sT1}, 40960',
                f's_lshl_b32 s{sT0}, s{sT0}, 8', f's_add_u32 s{sWtS}, s{sWtS}, s{sT0}']
        prep += [f'v_lshrrev_b32 v{vWtr}, 4, v{vLane}', f'v_and_b32 v{vWt}, 15, v{vLane}', f'v_lshlrev_b32 v{vWt+1}, 1, v{vWtr}',
                 f'v_xor_b32 v{vWt}, v{vWt}, v{vWt+1}', f'v_lshlrev_b32 v{vWt}, 4, v{vWt}',
                 f'v_xor_b32 v{vWt+1}, 128, v{vWt}',
                 f'v_mul_u32_u24 v{vWtr}, 1280, v{vWtr}', f'v_add_u32 v{vWt}, v{vWt}, v{vWtr}',
                 f'v_add3_u32 v{vWt+1}, v{vWt+1}, v{vWtr}, s{sT2}']
        prep.insert(0, f's_mov_b32 s{sT2}, {4 * 1280 - 1024}')
        prep += [f'v_lshrrev_b32 v{vT}, 2, v{vLane}', f'v_lshlrev_b32 v{vWtr}, 8, v{vT}', f'v_and_b32 v{vT}, 7, v{vT}',
                 f'v_lshl_add_u32 v{vWtr}, v{vT}, 5, v{vWtr}', f'v_and_b32 v{vT}, 3, v{vLane}', f'v_lshl_add_u32 v{vWtr}, v{vT}, 3, v{vWtr}',
                 f's_lshl_b32 s{sT0}, s{sWv}, 13', f's_add_u32 s{sT0}, s{sT0}, 65536', f'v_add_u32 v{vWtr}, s{sT0}, v{vWtr}']
        A(prep)
        A([f's_mul_i32 s{sT0}, s{sH}, {HS}', f's_lshl_b32 s{sT1}, s{sR}, 13', f's_add_u32 s{sT0}, s{sT0}, s{sT1}',
           f's_mul_i32 s{sEnd}, s{sHF}, {VF - KF}', f's_add_u32 s{sT0}, s{sT0}, s{sEnd}', f's_add_u32 s{sNext}, s{sT0}, {KF}',
           f's_mov_b32 s{sSrc}, s{sNext}', f's_lshl_b32 s{sT0}, s{sI}, 15', f's_sub_u32 s{sEnd}, s{sNext}, s{sT0}',
           f's_add_u32 s{sEnd}, s{sEnd}, {16 * 32768}',
           f's_lshl_b32 s{sMT}, s{sHF}, 16', f's_add_u32 s{sMT}, s{sMT}, s{sT1}'])
        for k in range(64, 144):
            A(f'v_mov_b32 v{k}, 0')
        for k in range(176):
            A(f'v_accvgpr_write_b32 a{k}, 0')

    units = [('K', 0, 0), ('K', 0, 1), ('K', 1, 0), ('K', 1, 1)] + [('V', 0, c) for c in range(4)] + \
            [('K', 2, 0), ('K', 2, 1), ('K', 3, 0), ('K', 3, 1)] + [('V', 1, c) for c in range(4)] + \
            [('K', 4, 0), ('K', 4, 1), ('K', 5, 0), ('K', 5, 1)] + [('V', 2, c) for c in range(4)] + \
            [('K', 6, 0), ('K', 6, 1), ('K', 7, 0), ('K', 7, 1)] + [('V', 3, c) for c in range(4)]

    def ureg(self, u):
        return ('v', 64 + 8 * u) if u < 10 else ('a', 8 * (u - 10))

    def accK(self, c, kb):
        f, b = self.ureg(self.units.index(('K', kb, c >> 1)))
        return R(f, b + 4 * (c & 1))

    def accV(self, kb, c):
        f, b = self.ureg(self.units.index(('V', kb >> 1, c)))
        return R(f, b + 4 * (kb & 1))

    @staticmethod
    def acc2(rb, c):
        n = rb * 6 + c
        return 144 + 4 * n if n < 28 else 64 + 4 * (n - 28)

    C1F, W1F = 144, 176
    X2F, W2F = 176, 208

    def p1_mfmas(self, s):
        out = []
        wb = self.W1F + (s & 1) * 32
        for kb in range(8):
            cf = R('v', self.C1F + 4 * kb)
            for c in range(4):
                out.append(mfma(self.accK(c, kb), R('v', wb + 4 * c), cf))
            for c in range(4):
                out.append(mfma(self.accV(kb, c), cf, R('v', wb + 16 + 4 * c)))
        return out

    def p2_mfmas(self, s):
        out = []
        wb = self.W2F + (s & 1) * 24
        for rb in range(8):
            for c in range(6):
                cin = None
                if s == 16:
                    cin = '0' if c < 4 else R('v', vBias + 4 * (c - 4))
                out.append(mfma(R('v', self.acc2(rb, c)), R('a', wb + 4 * c), R('a', self.X2F + 4 * rb), cin))
        return out

    def reads_for(self, s, wimm):
        if s < 16:
            cr = [f'ds_read_b128 {R("v", self.C1F + 4 * kb)}, v{vCr} offset:{kb * 2048}' for kb in range(8)]
            wb = self.W1F + (s & 1) * 32
            wr = [f'ds_read_b64_tr_b16 {R("v", wb + 16 * m + 4 * c + 2 * wh, 2)}, v{vWr + c} offset:{wimm + m * 8192 + wh * 1024}'
                  for m in range(2) for c in range(4) for wh in range(2)]
        else:
            cr = [f'ds_read_b128 {R("a", self.X2F + 4 * rb)}, v{vCr} offset:{(rb >> 2) * 16384 + (rb & 3) * 4096}' for rb in range(8)]
            wb = self.W2F + (s & 1) * 24
            wr = [f'ds_read_b64_tr_b16 {R("a", wb + 4 * c + 2 * wh, 2)}, v{vWr + c} offset:{wimm + wh * 1024}'
                  for c in range(4) for wh in range(2)]
            wr += [f'ds_read_b64_tr_b16 {R("a", wb + 16 + 4 * c + 2 * wh, 2)}, v{vW1r + c} offset:{wimm + 8192 + wh * 512}'
                   for c in range(2) for wh in range(2)]
        return cr, wr

    def unit_ops(self, u, tmp):
        kind, a, b = self.units[u]
        f, base = self.ureg(u)
        ops = []
        src = base
        if f == 'a':
            ops += [f'v_accvgpr_read_b32 v{tmp + k}, a{base + k}' for k in range(8)]
            src = tmp
        ops += [f'v_cvt_pk_bf16_f32 v{tmp + k}, v{src + 2 * k}, v{src + 2 * k + 1}' for k in range(4)]
        if kind == 'K':
            ops.insert(0, f's_add_u32 s{sT2}, s{sKst}, {a * 4096}')
        else:
            ops.insert(0, f's_add_u32 s{sT2}, s{sVst}, {a * 8192}')
        if not self.o.get('nokv'):
            ops.append(Ins(f'buffer_store_dwordx4 {R("v", tmp)}, v{vLin}, {srd(WS)}, s{sT2} offen offset:{b * 1024} {self.o.get("kvfl", "sc1")}', tag='kv', keep_order=True))
        return ops

    def gemm_step(self, s, loop=False):
        p1 = s < 16
        G = Gaps(self.p1_mfmas(s) if p1 else self.p2_mfmas(s))
        gs = 8 if p1 else 6
        bar = gs - 2
        G.put(-1, WAIT(lg=True))
        early = []
        nxt = s + 1
        par = nxt & 1
        if nxt <= 35:
            if loop:
                if s & 1:
                    early += [f's_add_u32 s{sCd}, s{sCbuf}, s{sW4k}', f's_add_u32 s{sCbuf}, s{sCbuf}, 32768',
                              f's_cmp_eq_u32 s{sCbuf}, {LDS}', f's_cselect_b32 s{sCbuf}, 65536, s{sCbuf}']
                    early += [f'v_xor_b32 v{vWr + c}, 32768, v{vWr + c}' for c in range(4)]
                early.append(f'v_add_u32 v{vCr}, s{sCbuf}, v{vCb + par}')
                wimm = 16384 if par else 0
            else:
                if s == 11:
                    early += [f'v_and_b32 v{vWr + c}, 0x7fff, v{vWr + c}' for c in range(4)]
                early.append(f'v_add_u32 v{vCr}, {65536 + ((nxt >> 1) % 3) * 32768}, v{(vCb if nxt < 16 else vCb2) + par}')
                wimm = (nxt % 4) * 16384
        G.seq(early, 0, bar - 1)
        if self.o.get('steps') and not loop:
            G.put(0, f's_memtime s[{sStamp}:{sStamp+1}]')
            G.put(bar + 1, f'v_writelane_b32 v59, s{sStamp}, {s}')
        wb_ = WAIT(vm=True, lg=True)
        G.put(bar, wb_)
        barI = Ins('s_barrier', after=self.bar_after.get(s, ()))
        G.put(bar, barI)
        if nxt <= 35:
            cr, wr = self.reads_for(nxt, wimm)
            same = (nxt < 16) == p1
            for k, x in enumerate(cr):
                G.put(gs * k + gs - 1 if same else gs + 1 + 6 * k, x)
        dm = []
        cp, ch = (s + 5) >> 1, (s + 1) & 1
        if cp <= 17:
            if loop:
                dm.append(f's_add_u32 m0, s{sCd}, {16384 * ch}')
            else:
                dm.append(f's_add_u32 m0, s{sW4k}, {65536 + (cp % 3) * 32768 + ch * 16384}')
            so = (sCso1 if ch else sCso0) if cp < 8 else (sX1 if ch else sX0)
            vo, q = (vCo, C1) if cp < 8 else (vCo2, C2)
            dm += [f'buffer_load_dwordx4 v{vo + j}, {srd(q)}, s{so} offen offset:{j * 1024} lds' for j in range(4)]
            dm.append(f's_add_u32 s{so}, s{so}, 128')
        if s + 4 <= 35:
            if loop:
                dm.append(f's_add_u32 m0, s{sWT}, {16384 * (s & 1)}')
            else:
                dm.append(f's_add_u32 m0, s{sW4k}, {(s % 4) * 16384}')
            if s + 4 < 16:
                dm += [f'buffer_load_dwordx4 v{vWo + j}, {srd(W1S)}, s{sWso} offen offset:{j * 1024} lds' for j in range(4)]
                dm.append(f's_add_u32 s{sWso}, s{sWso}, {32 * 8192}')
            else:
                dm += [f'buffer_load_dwordx4 v{vWo2 + j}, {srd(W2S)}, s{sW2so} offen offset:{j * 1024} lds' for j in range(4)]
                dm.append(f's_add_u32 s{sW2so}, s{sW2so}, s{sW2st}')
            if loop and (s & 1):
                dm.append(f's_xor_b32 s{sWT}, s{sWT}, 32768')
        dm += self.extra_dma.get(s, [])
        G.seq(dm, bar + 1, G.n - 4, spread=True)
        if nxt <= 35:
            G.seq(wr, bar + 2, G.n - gs - 2, spread=True)
        if s == 16:
            k = 0
            for u in range(10):
                k = G.seq(self.unit_ops(u, vTmp + 8 * (u % 2)), k, 26 + 2 * u)
        elif 17 <= s <= 27:
            u = 10 + 2 * (s - 17)
            G.seq(self.unit_ops(u, vTmp) + self.unit_ops(u + 1, vTmp + 8), 0, G.n - 1, spread=True)
        for (lo, hi, ops) in self.extra_ops.get(s, []):
            G.seq(ops, lo, hi)
        return G

    def set_flag(self, val, after):
        return [f'v_mov_b32 v{vT}, {val}', WAIT(vm=True),
                Ins(f'buffer_store_dword v{vT}, off, {srd(WS)}, s{sFlag} sc1', after=after, keep_order=True)]

    def spin(self, load, cmp, name):
        L, Lb, Ll = self.lab(name), self.lab(name + 'back'), self.lab(name + 'loop')
        T = self.tail
        T(L + ':')
        T(f's_mov_b32 s{sSpin}, 0x40000')
        T(Ll + ':')
        T('s_sleep 2')
        T(load)
        T(f's_sub_u32 s{sSpin}, s{sSpin}, 1')
        T(f's_cmp_eq_u32 s{sSpin}, 0')
        T('s_waitcnt vmcnt(0)')
        T(f's_cbranch_scc1 {Lb}')
        T(cmp)
        T(f's_cbranch_vccnz {Ll}', taken=False)
        T(f's_branch {Lb}')
        return [WAIT(vm=True), cmp, Ins(f's_cbranch_vccnz {L}', taken='spin'), Lb + ':']

    def phase12(self):
        A = self.A
        self.bar_after = {}
        self.extra_dma = {}
        self.extra_ops = {}
        vP, vPa = vT + 1, vT + 2
        self.extra_ops[30] = [(6, 40, self.set_flag(1, ('kv',)))]
        ld0 = f'buffer_load_dword v{vP}, off, {srd(DBG)}, 0 sc1'
        self.extra_ops[28] = [(8, 40, [ld0])]
        poll_addr = [f'v_lshrrev_b32 v{vPa}, 2, v{vLane}', f'v_and_b32 v{vPa}, 7, v{vPa}', f'v_lshlrev_b32 v{vPa}, 12, v{vPa}',
                     f'v_and_b32 v{vT}, 3, v{vLane}', f'v_lshl_add_u32 v{vPa}, v{vT}, 2, v{vPa}',
                     f's_lshl_b32 s{sT3}, s{sH}, 7', f's_add_u32 s{sT3}, s{sT3}, {FL}']
        self.extra_ops[31] = [(6, 46, self.spin(ld0, f'v_cmp_ne_u32 vcc, 0x100, v{vP}', 'cnt0') + poll_addr)]
        ld1 = f'buffer_load_dword v{vP}, v{vPa}, {srd(WS)}, s{sT3} offen sc1'
        self.extra_ops[33] = [(30, 46, [ld1])]
        vWt, vWtr = vTmp + 16, vTmp + 18
        dm = []
        for jj in range(4):
            dm += [f's_lshl_b32 m0, s{sWv}, 13', f's_add_u32 m0, m0, {65536 + jj * 2048}']
            dm += [f'buffer_load_dwordx4 v{vWt + e}, {srd(TS)}, s{sWtS} offen offset:{e * 1024} lds' for e in range(2)]
            dm.append(f's_add_u32 s{sWtS}, s{sWtS}, {8 * 1280}')
        self.extra_dma[31] = dm[:10]
        self.extra_dma[32] = dm[10:]
        rd = [WAIT(vm=True)]
        for nb in range(8):
            rd.append(f'v_xor_b32 v{vTmp + nb}, {nb * 32}, v{vWtr}')
        for nb in range(8):
            rd += [Ins(f'ds_read_b64_tr_b16 {R("a", 4 * nb + 2 * wh, 2)}, v{vTmp + nb} offset:{wh * 4096}') for wh in range(2)]
        self.extra_ops[34] = [(12, 46, rd)]
        st = []
        for nb in range(8):
            if nb == 4:
                st.append(f's_add_u32 s{sWtD}, s{sWtD}, 4096')
            st.append(Ins(f'buffer_store_dwordx4 {R("a", 4 * nb)}, v{vLin}, {srd(WS)}, s{sWtD} offen offset:{(nb & 3) * 1024} sc1', tag='p2'))
        pre, grp = self.attn_prefetch()
        self.extra_ops[33].append((0, 29, pre))
        kv = self.spin(ld1, f'v_cmp_gt_u32 vcc, 1, v{vP}', 'kv') + grp
        self.extra_ops[35] = [(5, 47, kv + st)]

        A(f's_mov_b32 s{sCbuf}, 65536')
        A(f's_add_u32 s{sCd}, s{sW4k}, {65536 + 2 * 32768}')
        A(f's_mov_b32 s{sWT}, s{sW4k}')
        A(f's_mov_b32 s{sCnt}, 5')
        A(f'v_add_u32 v{vCr}, 65536, v{vCb}')
        self.stamp(0)
        if self.stamps:
            A(f'v_mov_b32 v{vT + 2}, s{sEx0}')
            A(f's_add_u32 s{sStamp}, s{sStamp}, {8 * 31}')
            A('buffer_store_dwordx2 v[%d:%d], off, %s, s%d' % (vT + 1, vT + 2, srd(WS), sStamp))
        A(WAIT(vm=True))
        A('s_barrier', after=('zero',))
        cr, wr = self.reads_for(0, 0)
        A(cr[:1] + wr + cr[1:])
        Ls = self.lab('noadd')
        A(f's_cmp_lg_u32 s{sWv}, 0')
        A(f's_cbranch_scc1 {Ls}')
        A(f'v_mov_b32 v{vT}, 1')
        A('s_mov_b64 exec, 1')
        A(f'buffer_atomic_add v{vT}, off, {srd(DBG)}, 0 sc1')
        A('s_mov_b64 exec, -1')
        A(Ls + ':')
        self.stamp(1)
        A('.p2align 3')
        A('L_p1loop:')
        G = self.gemm_step(0, loop=True)
        G.seq([f's_cmp_eq_u32 s{sCnt}, 0', 's_cbranch_scc1 L_p1exit'], 63, 63)
        self.emit(G, 'p1loop')
        G = self.gemm_step(1, loop=True)
        G.seq([f's_sub_u32 s{sCnt}, s{sCnt}, 1'], 60, 62)
        G.put(63, 's_branch L_p1loop')
        self.emit(G, 'p1loop')
        A('L_p1exit:')
        for s in range(11, 36):
            G = self.gemm_step(s)
            if s == 14:
                ops = [WAIT(vm=True)]
                for c in range(2):
                    b = vBias + 4 * c
                    ops += [f'v_and_b32 v{b+3}, 0xffff0000, v{b+1}', f'v_lshlrev_b32 v{b+2}, 16, v{b+1}',
                            f'v_and_b32 v{b+1}, 0xffff0000, v{b}', f'v_lshlrev_b32 v{b}, 16, v{b}']
                G.seq(ops, 10, 60)
            if s == 16:
                self.stamp(2)
            self.emit(G, 'p1' if s < 16 else 'p2')
        self.stamp(3)
        if self.o.get('steps'):
            self.dump_steps()

    vX = 22

    def attn_prefetch(self):
        import gen_attn as ga
        o = [f'v_add_u32 v{ga.vLin2}, 4096, v{vLin}', f's_mov_b32 s{C1}, s{WS}', f's_mov_b32 s{C1+1}, s{WS+1}', f's_mov_b32 s{C1+2}, s{WS+2}']
        return o, ga.dma_group(0) + ga.dma_group(16384)

    def p2_epilogue(self):
        A = self.A
        t = vTmp
        import gen_attn as ga
        Lk, Lkb = self.lab('k2'), self.lab('k2back')
        A(f's_cmp_eq_u32 s{sHF}, 0')
        A(f's_cbranch_scc1 {Lk}')
        A(Lkb + ':')
        self.tail(Lk + ':')
        ga.straight(self.tail, ga.dma_group(0))
        self.tail(f's_branch {Lkb}')
        ga.setup(self)
        A(f's_lshl_b32 s{sT0}, s{sI}, 15')
        A(f's_add_u32 s{ga.sLim}, s{sNext}, s{sT0}')
        A(f's_add_u32 s{ga.sLim}, s{ga.sLim}, 32768')
        Lg, Ld = self.lab('gate'), self.lab('actdone')
        A(f's_cmp_ge_u32 s{sH}, 27')
        A(f's_cbranch_scc1 {Lg}')
        A(f'''
        s_lshl_b32 s{sT0}, s{sH}, 13
        s_lshl_b32 s{sT1}, s{sHF}, 12
        s_add_u32 s{sT0}, s{sT0}, s{sT1}
        s_mul_i32 s{sT1}, s{sR}, {AF_RT}
        s_add_u32 s{sT0}, s{sT0}, s{sT1}
        s_add_u32 s{sT0}, s{sT0}, {AF}
        s_mul_i32 s{sT1}, s{sI}, {2 * AF_RT}
        s_sub_u32 s{sT2}, s{sT0}, s{sT1}
        s_add_u32 s{sT2}, s{sT2}, {30 * AF_RT}
        s_add_u32 s{sT1}, s{sT0}, s{sT1}
        s_mov_b32 s{sEx0}, {f32(LOG2E)}
        s_mov_b32 s{sEx1}, {f32(LOG2E)}
        ''')
        ex = f's[{sEx0}:{sEx1}]'
        for rb in range(8):
            hs = [self.acc2(rb, 4) + k for k in range(4)] + [self.acc2(rb, 5) + k for k in range(4)]
            u = t + 8 * (rb & 1)
            for k in range(0, 8, 2):
                A(f'v_pk_mul_f32 {R("v", u + k, 2)}, {R("v", hs[k], 2)}, {ex}')
            for k in range(8):
                A(f'v_exp_f32 v{u + k}, v{u + k}')
            for k in range(0, 8, 2):
                A(f'v_pk_add_f32 {R("v", u + k, 2)}, {R("v", u + k, 2)}, 1.0 op_sel_hi:[1,0]'.replace('[1,0]', '[1_0]'))
            for k in range(0, 8, 2):
                A(f'v_pk_fma_f32 {R("v", u + k, 2)}, {R("v", u + k, 2)}, {R("v", u + k, 2)}, 1.0 op_sel_hi:[1_1_0]')
            for k in range(8):
                A(f'v_rcp_f32 v{u + k}, v{u + k}')
            for k in range(0, 8, 2):
                A(f'v_pk_fma_f32 {R("v", u + k, 2)}, {R("v", u + k, 2)}, -2.0, 1.0 op_sel_hi:[1_0_0]')
            for k in range(0, 8, 2):
                A(f'v_pk_mul_f32 {R("v", u + k, 2)}, {R("v", u + k, 2)}, {R("v", hs[k], 2)}')
            o = t + 16 + 4 * (rb & 1)
            for k in range(4):
                A(f'v_cvt_pk_bf16_f32 v{o + k}, v{u + 2 * k}, v{u + 2 * k + 1}')
            A(f'buffer_store_dwordx4 {R("v", o)}, v{vLin}, {srd(WS)}, s{sT2 if rb < 4 else sT1} offen offset:{(rb & 3) * 1024} sc1', tag='p2')
        A(Ld + ':')
        A(f's_lshl_b32 s{sT0}, s{sR}, 15')
        A(f's_add_u32 s{sT0}, s{sT0}, {98304}')
        A(f's_lshl_b32 s{sT1}, s{sHF}, 11')
        A(f's_add_u32 s{sT1}, s{sT1}, s{sT0}')
        A(f'v_add_u32 v{self.vX}, s{sT1}, v{vLin}')
        A(f's_lshl_b32 s{sT1}, s{sHF}, 13')
        A(f's_add_u32 s{sT1}, s{sT1}, s{sT0}')
        A(f'v_add_u32 v{self.vX+1}, s{sT1}, v{vLin}')
        A(f'v_xor_b32 v{self.vX+2}, 8192, v{self.vX+1}')
        sc = f's[{sScale}:{sScale+1}]'
        for rb in range(8):
            for d in range(2):
                tt = t + 4 * ((rb * 2 + d) % 4)
                for e in range(2):
                    b = self.acc2(rb, 2 * d + e)
                    A(f'v_pk_mul_f32 {R("v", b, 2)}, {R("v", b, 2)}, {sc}')
                    A(f'v_pk_mul_f32 {R("v", b + 2, 2)}, {R("v", b + 2, 2)}, {sc}')
                for e in range(2):
                    b = self.acc2(rb, 2 * d + e)
                    A(f'v_cvt_pk_bf16_f32 v{tt + 2 * e}, v{b}, v{b + 1}')
                    A(f'v_cvt_pk_bf16_f32 v{tt + 2 * e + 1}, v{b + 2}, v{b + 3}')
                A(f'ds_write_b128 v{self.vX}, {R("v", tt)} offset:{rb * 4096 + d * 1024}')
        A(WAIT(vm=True, lg=True))
        A('s_barrier')
        A(ga.rd(ga.VR, ga.vK, 0))
        for blk in range(2):
            if blk:
                A(ga.rd(ga.KR, ga.vK, 16384))
            for p in (2, 3, 0, 1):
                for ds in range(4):
                    A(f'ds_read_b128 {R("a", blk * 64 + p * 16 + ds * 4)}, v{self.vX + 1 + (p >> 1)} offset:{blk * 16384 + (p & 1) * 4096 + ds * 1024}')
        T = self.tail
        T(Lg + ':')
        T(f's_cmp_lg_u32 s{sH}, 27')
        T(f's_cbranch_scc1 {Ld}')
        T(f's_cmp_lg_u32 s{sHF}, 0')
        T(f's_cbranch_scc1 {Ld}')
        T(f'''
        s_lshl_b32 s{sT0}, s{sR}, 6
        s_add_u32 s{sT0}, s{sT0}, {GG}
        s_lshl_b32 s{sT1}, s{sI}, 9
        s_sub_u32 s{sT2}, s{sT0}, s{sT1}
        s_add_u32 s{sT2}, s{sT2}, {15 * 512}
        s_add_u32 s{sT1}, s{sT0}, s{sT1}
        v_lshlrev_b32 v{t + 8}, 2, v{vLane}
        ''')
        for rb in range(8):
            b = self.acc2(rb, 4)
            T(f'v_permlane32_swap_b32 v{b + 1}, v{b + 2}')
            T('s_nop 1')
            T(f'v_add_f32 v{t + rb}, v{b}, v{b + 2}')
            T(f'v_mul_f32 v{t + rb}, {f32(-LOG2E)}, v{t + rb}')
            T(f'v_exp_f32 v{t + rb}, v{t + rb}')
            T('s_nop 0')
            T(f'v_add_f32 v{t + rb}, 1.0, v{t + rb}')
            T(f'v_rcp_f32 v{t + rb}, v{t + rb}')
        T('s_mov_b64 exec, 0xffff')
        for rb in range(8):
            T(f'buffer_store_dword v{t + rb}, v{t + 8}, {srd(WS)}, s{sT2 if rb < 4 else sT1} offen offset:{(rb & 3) * 128} sc1', tag='p2')
        T('s_mov_b64 exec, -1')
        T(f's_branch {Ld}')

    def dump_steps(self, reg=59):
        A = self.A
        A(f's_lshl_b32 s{sT0}, s2, 2')
        A(f's_add_u32 s{sT0}, s{sT0}, s{sWv}')
        A(f's_lshl_b32 s{sT0}, s{sT0}, 8')
        A(f's_add_u32 s{sT0}, s{sT0}, {DUMP + 0x2100000}')
        A(f'v_lshrrev_b32 v{vT}, 2, v{vLin}')
        A(f'buffer_store_dword v{reg}, v{vT}, {srd(WS)}, s{sT0} offen')

    def dump_q(self):
        A = self.A
        A('s_waitcnt vmcnt(0) lgkmcnt(0)')
        A(f's_lshl_b32 s{sT0}, s2, 2')
        A(f's_add_u32 s{sT0}, s{sT0}, s{sWv}')
        A(f's_lshl_b32 s{sT0}, s{sT0}, 15')
        A(f's_add_u32 s{sT0}, s{sT0}, {DUMP}')
        for k in range(32):
            A(f'buffer_store_dwordx4 {R("a", 4 * k)}, v{vLin}, {srd(WS)}, s{sT0} offen')
            A(f's_add_u32 s{sT0}, s{sT0}, 1024')

    def build(self):
        A = self.A
        self.init()
        self.phase12()
        self.p2_epilogue()
        self.stamp(4)
        if self.stop <= 2:
            self.dump_q()
        else:
            from gen_attn import attention, phase4
            attention(self)
            if self.stop > 3:
                phase4(self)
        A('s_waitcnt vmcnt(0)')
        A('L_exit:')
        A('s_endpgm')
        A.ins += self.tail.ins
        return A


def header():
    ref = open('cdna_kernels/%s.s.ref' % NAME).read().split('\n')
    h = [l for l in ref if l.startswith(';') and '@launch' not in l and 'Override' not in l and 'grid=ceil' not in l]
    return '\n'.join(h) + f'''
; @launch grid=(256,1,1) block=(256,1,1) lds={LDS}
.amdgcn_target "amdgcn-amd-amdhsa--gfx950"
.text
.globl {KNAME}
.p2align 8
.type {KNAME},@function
{KNAME}:
'''


FOOT = f'''.section .rodata,"a"
.p2align 6
.amdhsa_kernel {KNAME}
  .amdhsa_next_free_vgpr 512
  .amdhsa_next_free_sgpr 102
  .amdhsa_accum_offset 256
  .amdhsa_group_segment_fixed_size 0
  .amdhsa_kernarg_size 112
  .amdhsa_user_sgpr_count 2
  .amdhsa_user_sgpr_kernarg_segment_ptr 1
  .amdhsa_system_sgpr_workgroup_id_x 1
.end_amdhsa_kernel
'''


def generate(out, stop=99, stamps=False, opts=None, check_wgs=(0, 255, 30, 101, 62, 39), quiet=False):
    g = Gen(stop, stamps, opts)
    A = g.build()
    ck = Checker(A, LDS)
    for wg in check_wgs:
        T = ck.run(wg)
    if ck.haz:
        if not quiet:
            print('auto s_nop before:', [(A.ins[k].text, n) for k, n in sorted(ck.haz.items())])
        for k in sorted(ck.haz, reverse=True):
            A.ins.insert(k, Ins('s_nop %d' % (ck.haz[k] - 1)))
        ck = Checker(A, LDS)
    for wg in check_wgs:
        T = ck.run(wg, resolve=False)
        if not quiet:
            print('wg', wg, 'instr', [len(t) for t in T], 'est cycles', [est_cycles(t) for t in T])
    for knob in ('spin', 'slow'):
        ck.run(check_wgs[1], knobs={knob: True}, resolve=False)
    conf = {k: v for k, v in ck.conf.items() if v}
    if not quiet:
        print('overflow slots', g.ovf)
        print('bank conflicts at', len(conf), 'instructions', [(A.ins[k].text, v) for k, v in list(conf.items())[:5]])
    for e in ck.errors[:40]:
        print('ERROR', e)
    text = header() + A.render().replace('[1_0]', '[1,0]').replace('[1_1_0]', '[1,1,0]').replace('[1_0_0]', '[1,0,0]') + FOOT
    open(out, 'w').write(text)
    return not ck.errors


if __name__ == '__main__':
    import argparse
    ap = argparse.ArgumentParser()
    ap.add_argument('out')
    ap.add_argument('--stop', type=int, default=99)
    ap.add_argument('--stamps', action='store_true')
    ap.add_argument('-o', action='append', default=[])
    a = ap.parse_args()
    opts = dict((x.split('=') + ['1'])[:2] for x in a.o)
    ok = generate(a.out, a.stop, a.stamps, opts)
    sys.exit(0 if ok else 1)
```
